```python
import torch

def _softmax(x, axis=-1):
    return torch.softmax(x, dim=axis)

def _gelu(x):
    return torch.nn.functional.gelu(x, approximate='tanh')

def _silu(x):
    return torch.nn.functional.silu(x)

def _sigmoid(x):
    return torch.sigmoid(x)

def _layernorm(x, axis=-1, eps=1e-05):
    m = x.mean(dim=axis, keepdim=True)
    v = x.var(dim=axis, keepdim=True, unbiased=False)
    return (x - m) / torch.sqrt(v + eps)

def _scatter_add(tgt, idx, src, axis=0):
    return tgt.clone().index_add_(axis, idx, src)

def _segment_sum(src, seg, n):
    out = torch.zeros((n,) + src.shape[1:], dtype=src.dtype)
    return out.index_add_(0, seg, src)

def _pad(x, pw):
    flat = tuple((v for pair in reversed(pw) for v in pair))
    return torch.nn.functional.pad(x, flat)
kernel_name = 'interleave_layers__memory_aug_recurrent_mem_tr__dense_activation_silu__prompt'

def setup_inputs():

    _w = lambda a: (lambda t: t.to(torch.bfloat16) if t.is_floating_point() else t)(torch.as_tensor(a))

    def _A_setup():
        B, S, Dm = (1, 2048, 512)
        H, Dh = (32, 128)
        M, seg = (8, 32)
        seg = min(seg, S)
        S = S // seg * seg
        return {'x': _w((lambda *s: torch.randn(*s, dtype=torch.bfloat16) * 0.05)(B, S, Dm)), 'mem0': _w((lambda *s: torch.randn(*s, dtype=torch.bfloat16) * 0.2)(B, M, Dm)), 'Wq': _w((lambda *s: torch.randn(*s, dtype=torch.bfloat16) * 1.6)(Dm, H, Dh) * Dm ** (-0.5)), 'Wk': _w((lambda *s: torch.randn(*s, dtype=torch.bfloat16) * 1.6)(Dm, H, Dh) * Dm ** (-0.5)), 'Wv': _w((lambda *s: torch.randn(*s, dtype=torch.bfloat16) * 0.2)(Dm, H, Dh) * Dm ** (-0.5)), 'Wo': _w((lambda *s: torch.randn(*s, dtype=torch.bfloat16) * 0.2)(H, Dh, Dm) * (H * Dh) ** (-0.5)), 'seg_len': seg}
    _A_in = _A_setup()

    def _B_setup():
        B, S, D, F = (1, 2048, 512, 1376)
        return {'x': _w((lambda *s: torch.randn(*s, dtype=torch.bfloat16) * 0.05)(B, S, D)), 'w1': _w((lambda *s: torch.randn(*s, dtype=torch.bfloat16) * 0.4)(D, F) * D ** (-0.5)), 'w2': _w((lambda *s: torch.randn(*s, dtype=torch.bfloat16) * 0.1)(F, D) * F ** (-0.5))}
    _B_in = _B_setup()
    return {'A_x': _A_in['x'], 'A_mem0': _A_in['mem0'], 'A_Wq': _A_in['Wq'], 'A_Wk': _A_in['Wk'], 'A_Wv': _A_in['Wv'], 'A_Wo': _A_in['Wo'], 'A_seg_len': _A_in['seg_len'], 'B_x': _B_in['x'], 'B_w1': _B_in['w1'], 'B_w2': _B_in['w2']}

def reference(A_x, A_mem0, A_Wq, A_Wk, A_Wv, A_Wo, A_seg_len, B_x, B_w1, B_w2):

    def _A_ref(x, mem0, Wq, Wk, Wv, Wo, seg_len):
        B, S, Dm = x.shape
        H, Dh = (Wq.shape[1], Wq.shape[2])
        M = mem0.shape[1]
        scale = Dh ** (-0.5)
        n_seg = S // seg_len
        L = M + seg_len
        idx = torch.arange(L)
        mask = (idx[:, None] < M) | (idx[:, None] >= idx[None, :])
        mem = mem0
        outs = []
        for s in range(n_seg):
            xs = x[:, s * seg_len:(s + 1) * seg_len, :].clone()
            h = torch.concatenate([mem, xs], axis=1)
            q = torch.einsum('btd,dhe->bhte', h, Wq)
            k = torch.einsum('btd,dhe->bhte', h, Wk)
            v = torch.einsum('btd,dhe->bhte', h, Wv)
            scores = torch.einsum('bhqe,bhke->bhqk', q, k) * scale
            scores = torch.where(mask[None, None], scores, -1000000000.0)
            p = _softmax(scores, axis=-1)
            o = torch.einsum('bhqk,bhke->bhqe', p, v)
            o = torch.einsum('bhte,hed->btd', o, Wo)
            mem = o[:, :M, :].clone()
            outs.append(o[:, M:, :])
        return torch.concatenate(outs, axis=1)

    def _B_ref(x, w1, w2):
        h = torch.einsum('bsd,df->bsf', x, w1)
        h = _silu(h)
        out = torch.einsum('bsf,fd->bsd', h, w2)
        return out
    x = A_x
    x = x + _A_ref(_layernorm(x, axis=-1), A_mem0, A_Wq, A_Wk, A_Wv, A_Wo, A_seg_len)
    x = x + _B_ref(_layernorm(x, axis=-1), B_w1, B_w2)
    x = x + _A_ref(_layernorm(x, axis=-1), A_mem0, A_Wq, A_Wk, A_Wv, A_Wo, A_seg_len)
    x = x + _B_ref(_layernorm(x, axis=-1), B_w1, B_w2)
    return x
```

```python
from emit import *
CNT_H = 0x0
CNT_S = 0x20000
ZERO_END = 0x28000
ENG = 0x40000; ENG_STRIDE = 0x50000; MEMB = 0x40000
XR = 0x0200000; XN = 0x0600000; X1 = 0x0A00000; XN1 = 0x0E00000
KVM = 0x1200000; QKV = 0x2200000; P1 = 0x8200000; P2 = 0xC200000
WS_BYTES = 0x10000000
NFS = 11
K_X, K_MEM0, K_WQ, K_WK, K_WV, K_WO, K_W1, K_W2, K_OUT, K_DBG, K_WS = 0, 8, 16, 24, 32, 40, 64, 72, 80, 88, 96
SWS = 4; SA = 8; SB = 12; sW = 16; sIDX = 17; sC0 = 18; sC1 = 19; sCUR = 20; sNXT = 21; sPEND = 22
sT0 = 24; sT1 = 25; sT2 = 26; sT3 = 27; sSTART = 28
sTOG = 30; sLO = 31; sHI = 32; sOFF = 33; sOFF2 = 34; sOFF3 = 35; sTM = 36
sEX = 38
TIMEOUT = 3000000
def srd(a, d, karg, nbytes):
    a(f"s_load_dwordx2 {S(d,2)}, s[0:1], {karg}")
    a(f"s_mov_b32 {S(d+2)}, {nbytes}\ns_mov_b32 {S(d+3)}, 0x00020000\ns_waitcnt lgkmcnt(0)")
def timeout_check(a, endlabel):
    a(f"s_memrealtime {S(sTM,2)}\ns_waitcnt lgkmcnt(0)\ns_sub_u32 {S(sTM)}, {S(sTM)}, {S(sSTART)}")
    a(f"s_cmp_gt_u32 {S(sTM)}, {TIMEOUT}\ns_cbranch_scc1 {endlabel}")
def load_w(a, units, srdreg, voff, ntiles, stage0, nslots, soff=None):
    nd = ntiles // 2
    suf = {1: "dword", 2: "dwordx2", 4: "dwordx4"}[nd]
    def issue(u):
        base = stage0 + (u % nslots) * 8 * nd
        for jj, ro in enumerate(units[u][0]):
            if soff is None: a(f"s_mov_b32 {S(sT0)}, {ro}")
            else: a(f"s_add_u32 {S(sT0)}, {S(soff)}, {ro}")
            a(f"buffer_load_{suf} {V(base+jj*nd, nd)}, {V(voff)}, {S(srdreg,4)}, {S(sT0)} offen")
    n = len(units)
    for u in range(min(nslots, n)): issue(u)
    for u in range(n):
        inflight = min(n, u + nslots) - u - 1
        a(f"s_waitcnt vmcnt({8*inflight})")
        base = stage0 + (u % nslots) * 8 * nd
        units[u][1](base, nd)
        if u + nslots < n: issue(u + nslots)
def perm_to(a, base, nd, j, r, dst, tmp):
    lo = base + (2 * r) * nd + j // 2; hi = base + (2 * r + 1) * nd + j // 2
    sel = sHI if j % 2 else sLO
    if dst[0] == "v": a(f"v_perm_b32 {V(dst[1])}, {V(hi)}, {V(lo)}, {S(sel)}")
    else: a(f"v_perm_b32 {V(tmp)}, {V(hi)}, {V(lo)}, {S(sel)}\nv_accvgpr_write_b32 {A(dst[1])}, {V(tmp)}")
def xsum(a, v, t, bits):
    for b in bits:
        if b == 3: a(f"v_add_f32_dpp {V(v)}, {V(v)}, {V(v)} row_ror:8 row_mask:0xf bank_mask:0xf")
        else:
            a(f"v_mov_b32 {V(t)}, {V(v)}\nv_permlane{16 if b == 4 else 32}_swap_b32 {V(v)}, {V(t)}\nv_add_f32 {V(v)}, {V(v)}, {V(t)}")
def xmax(a, v, t, bits):
    for b in bits:
        a(f"v_mov_b32 {V(t)}, {V(v)}\nv_permlane{16 if b == 4 else 32}_swap_b32 {V(v)}, {V(t)}\nv_max_f32 {V(v)}, {V(v)}, {V(t)}")
LDS_CODE = 163776
class Role:
    NI = 64; R = 1; prefer = 0; NL = 0; NS = 0
    def flag_off(s, a, dst, l, cur): raise NotImplementedError
    def gen(s, a, end):
        nm = s.name
        NI = s.NI
        s.prologue(a)
        a(f"s_mov_b32 {S(sPEND)}, -1\ns_mov_b32 {S(sTOG)}, 0")
        def flagloads():
            for l, c in ((0, sC0), (1, sC1)):
                a(f"s_min_u32 {S(sT1)}, {S(c)}, {NI-1}")
                s.flag_off(a, sT0, l, sT1)
                a(f"buffer_load_dword {V(3+l)}, v2, {S(SWS,4)}, {S(sT0)} offen sc1")
        def decide():
            a(f"v_readfirstlane_b32 {S(sT1)}, v3\nv_readfirstlane_b32 {S(sT2)}, v4\ns_mov_b32 {S(sT0)}, -1")
            for l in ((1, 0) if s.prefer == 0 else (0, 1)):
                c = (sC0, sC1)[l]; sk = a.label("Lsk")
                a(f"s_cmp_ge_u32 {S(c)}, {NI}\ns_cbranch_scc1 {sk}\ns_cmp_lg_u32 {S(sT1+l)}, {s.expect}\ns_cbranch_scc1 {sk}")
                a(f"s_add_u32 {S(sT0)}, {S(c)}, {l*NI}\n{sk}:")
        def putcode():
            a(f"v_mov_b32 v5, {S(sT0)}\nv_mov_b32 v6, {S(sTOG)}\nds_write_b32 v6, v5 offset:{LDS_CODE % 65536 if False else 0}" if False else "")
            a(f"s_lshl_b32 {S(sT1)}, {S(sTOG)}, 2\ns_add_u32 {S(sT1)}, {S(sT1)}, {LDS_CODE}\nv_mov_b32 v5, {S(sT0)}\nv_mov_b32 v6, {S(sT1)}\nds_write_b32 v6, v5")
        def getcode(dst):
            a(f"s_lshl_b32 {S(sT1)}, {S(sTOG)}, 2\ns_add_u32 {S(sT1)}, {S(sT1)}, {LDS_CODE}\nv_mov_b32 v6, {S(sT1)}\nds_read_b32 v5, v6\ns_waitcnt lgkmcnt(0)\nv_readfirstlane_b32 {S(dst)}, v5")
        def advance(code):
            l1 = a.label("Lad"); l2 = a.label("Lad")
            a(f"s_cmp_ge_u32 {S(code)}, {NI}\ns_cbranch_scc1 {l1}\ns_add_u32 {S(sC0)}, {S(sC0)}, {s.R}\ns_branch {l2}\n{l1}:\ns_add_u32 {S(sC1)}, {S(sC1)}, {s.R}\n{l2}:")
        def signal():
            sk = a.label("Lsg")
            a(f"s_cmp_lg_u32 {S(sW)}, 0\ns_cbranch_scc1 {sk}")
            s.signal(a, sk)
            a(f"s_mov_b64 {S(sEX,2)}, exec\ns_mov_b64 exec, 1\nbuffer_atomic_add v5, v2, {S(SWS,4)}, {S(sT0)} offen\ns_mov_b64 exec, {S(sEX,2)}\n{sk}:")
            a(f"s_mov_b32 {S(sPEND)}, -1")
        a(f"{nm}_BLOCK:")
        a(f"s_cmp_eq_u32 {S(sPEND)}, -1\ns_cbranch_scc1 {nm}_B1\ns_waitcnt vmcnt(0)\ns_barrier")
        signal()
        a(f"{nm}_B1:\ns_min_u32 {S(sT0)}, {S(sC0)}, {S(sC1)}\ns_cmp_ge_u32 {S(sT0)}, {NI}\ns_cbranch_scc1 {end}")
        a(f"s_xor_b32 {S(sTOG)}, {S(sTOG)}, 1")
        a(f"s_cmp_lg_u32 {S(sW)}, 0\ns_cbranch_scc1 {nm}_B3\n{nm}_B2:")
        flagloads()
        a("s_waitcnt vmcnt(0)")
        decide()
        a(f"s_cmp_lg_u32 {S(sT0)}, -1\ns_cbranch_scc1 {nm}_B2x\ns_sleep 2")
        timeout_check(a, f"{nm}_B2x")
        a(f"s_branch {nm}_B2\n{nm}_B2x:")
        putcode()
        a(f"s_waitcnt lgkmcnt(0)\n{nm}_B3:\ns_barrier")
        getcode(sCUR)
        a(f"s_cmp_eq_u32 {S(sCUR)}, -1\ns_cbranch_scc1 {end}")
        advance(sCUR)
        s.loads(a, sCUR)
        flagloads()
        a(f"s_waitcnt vmcnt(0)\n{nm}_TOP:\ns_xor_b32 {S(sTOG)}, {S(sTOG)}, 1")
        a(f"s_cmp_lg_u32 {S(sW)}, 0\ns_cbranch_scc1 {nm}_T1")
        decide(); putcode()
        a(f"{nm}_T1:")
        s.stage(a)
        a("s_waitcnt lgkmcnt(0)\ns_barrier")
        getcode(sNXT)
        a(f"s_cmp_eq_u32 {S(sNXT)}, -1\ns_cbranch_scc1 {nm}_T2")
        advance(sNXT)
        s.loads(a, sNXT)
        a(f"{nm}_T2:")
        s.compute1(a)
        a(f"s_cmp_eq_u32 {S(sNXT)}, -1\ns_cbranch_scc1 {nm}_T3\ns_waitcnt vmcnt({s.NL})\ns_branch {nm}_T4\n{nm}_T3:\ns_waitcnt vmcnt(0)\n{nm}_T4:")
        a(f"s_waitcnt lgkmcnt(0)\ns_barrier\ns_cmp_eq_u32 {S(sPEND)}, -1\ns_cbranch_scc1 {nm}_T5")
        signal()
        a(f"{nm}_T5:")
        s.compute2(a)
        flagloads()
        s.stores(a)
        a(f"s_mov_b32 {S(sPEND)}, {S(sCUR)}\ns_cmp_eq_u32 {S(sNXT)}, -1\ns_cbranch_scc1 {nm}_BLOCK")
        a(f"s_mov_b32 {S(sCUR)}, {S(sNXT)}\ns_waitcnt vmcnt({s.NS})\ns_nop 7\ns_branch {nm}_TOP")
```

```python
import re
TRANS = ("v_exp_f32", "v_log_f32", "v_rcp_f32", "v_rsq_f32", "v_sqrt_f32")
def regs(tok):
    tok = tok.strip()
    tok = re.sub(r"^-|^abs\(|\)$|^\|", "", tok).rstrip("|")
    m = re.fullmatch(r"([vas])(\d+)", tok)
    if m: return [(m.group(1), int(m.group(2)))]
    m = re.fullmatch(r"([vas])\[(\d+):(\d+)\]", tok)
    if m: return [(m.group(1), i) for i in range(int(m.group(2)), int(m.group(3)) + 1)]
    if tok == "vcc": return [("s", "vcc")]
    return []
class Asm:
    def __init__(s):
        s.out = []; s.t = 0
        s.valu_w = {}; s.trans_w = {}; s.mfma_w = {}; s.mfma_c = {}; s.vs_w = {}; s.st_d = {}
        s.uid = 0
    def label(s, p="L"):
        s.uid += 1; return f"{p}_{s.uid}"
    def raw(s, line): s.out.append(line)
    def __call__(s, text):
        for line in text.split("\n"):
            line = line.split(";")[0].strip()
            if line: s.ins(line)
    def ins(s, line):
        if line.endswith(":") or line.startswith("."):
            s.out.append(line); return
        op, _, rest = line.partition(" ")
        toks = [x.strip() for x in rest.split(",")] if rest else []
        last_extra = ""
        if toks:
            parts = toks[-1].split()
            toks[-1] = parts[0]; last_extra = " ".join(parts[1:])
        R = [regs(x) for x in toks]
        need = 0
        def chk(d, rs, n):
            nonlocal need
            for r in rs:
                if r in d: need = max(need, n - (s.t - d[r] - 1))
        flat = lambda L: [r for x in L for r in x]
        mf = op.startswith("v_mfma") or op.startswith("v_smfmac")
        valu = op.startswith("v_") and not mf
        vmem = op.startswith(("global_", "buffer_"))
        ds = op.startswith("ds_")
        if mf:
            D = R[0]; sm = op.startswith("v_smfmac")
            AB = R[1] + R[2] + (R[3] if sm else [])
            C = D if sm else R[3]
            chk(s.valu_w, AB + C, 2)
            for r in AB:
                if r in s.mfma_w: need = max(need, 8 - (s.t - s.mfma_w[r][0] - 1))
            for r in C + D:
                if r in s.mfma_w and s.mfma_w[r][1] != (tuple(C) if r in C else None):
                    need = max(need, 6 - (s.t - s.mfma_w[r][0] - 1))
        elif valu:
            nd = 2 if (op.startswith(("v_add_co", "v_addc_co", "v_sub_co")) or "swap" in op) else 1
            W = flat(R[:nd]); S = flat(R[nd:])
            if "swap" in op or op.startswith(("v_fmac", "v_writelane")) or "dpp" in op or "row_" in last_extra or "quad_perm" in last_extra: S = S + W
            mw = {k: v[0] for k, v in s.mfma_w.items()}
            chk(mw, W + S, 8); chk(s.mfma_c, W, 3); chk(s.trans_w, S, 1); chk(s.st_d, W, 2)
            chk(s.vs_w, [r for r in S if r[0] == "s"], 4 if op.startswith(("v_readlane", "v_writelane")) else 2)
            if "permlane" in op or "dpp" in op or "row_" in last_extra or "quad_perm" in last_extra: chk(s.valu_w, S, 2)
            if op.startswith(("v_readlane", "v_readfirstlane")): chk(s.valu_w, S, 1)
        elif vmem or ds:
            A = flat(R)
            mw = {k: v[0] for k, v in s.mfma_w.items()}
            chk(mw, A, 8); chk(s.vs_w, [r for r in A if r[0] == "s"], 5)
            if "load" in op or "read" in op: chk(s.st_d, R[0], 1); chk(s.mfma_c, R[0], 3)
        while need > 0:
            n = min(need, 16); s.out.append(f"    s_nop {n-1}"); s.t += n; need -= n
        s.out.append("    " + line)
        if mf:
            for r in D: s.mfma_w[r] = (s.t, tuple(D)); s.valu_w.pop(r, None)
            for r in C: s.mfma_c[r] = s.t
        elif valu:
            for r in W:
                if r[0] == "s": s.vs_w[r] = s.t
                else:
                    s.valu_w[r] = s.t; s.mfma_w.pop(r, None)
                    if op.startswith(TRANS): s.trans_w[r] = s.t
                    else: s.trans_w.pop(r, None)
        elif vmem and "store" in op and ("x4" in op or "x3" in op):
            for r in (R[1] if op.startswith("global") else R[0]): s.st_d[r] = s.t
        s.t += (int(rest) + 1) if op == "s_nop" else 1
    def text(s): return "\n".join(s.out) + "\n"
def V(i, n=1): return f"v{i}" if n == 1 else f"v[{i}:{i+n-1}]"
def A(i, n=1): return f"a{i}" if n == 1 else f"a[{i}:{i+n-1}]"
def S(i, n=1): return f"s{i}" if n == 1 else f"s[{i}:{i+n-1}]"
```

```python
from roles2 import *
SM = "v_smfmac_f32_16x16x64_bf16"
L_KV = 131072; L_MEM = 147456; L_QK = 155648; L_VM = 160000
sL, sH, sS, sFAST, sTAG, sPB, sMW, sMR, sMZ = 40, 41, 42, 43, 46, 47, 48, 49, 50
sMLO, sMHI, sMG2, sM8 = 52, 54, 56, 58
sKV, sKVM, sFLG, sSIG = 60, 61, 62, 63
DELAY1, DELAY2 = 0, 0
def gen_engine(a, end):
    a(f"s_lshr_b32 {S(sL)}, s44, 5\ns_and_b32 {S(sH)}, s44, 31\ns_mov_b32 s45, {fbits(SC)}")
    a(f"""v_lshrrev_b32 v5, 4, v1
    v_and_b32 v6, 15, v1
    v_lshrrev_b32 v7, 1, v5
    v_and_b32 v9, 1, v5
    v_lshlrev_b32 v10, 4, v7
    v_lshl_add_u32 v11, v9, 2, v10          ; 16*(g/2)+4*(g%2)
    v_lshl_add_u32 v12, v9, 1, v10          ; 16*(g/2)+2*(g%2)
    v_lshlrev_b32 v11, 13, v11
    v_lshlrev_b32 v12, 10, v12
    s_lshl_b32 {S(sT1)}, {S(sH)}, 8
    s_and_b32 {S(sT2)}, {S(sW)}, 1
    s_lshl_b32 {S(sT3)}, {S(sT2)}, 7
    s_add_u32 {S(sT3)}, {S(sT3)}, {S(sT1)}
    v_lshlrev_b32 v13, 3, v6
    v_add3_u32 v8, v11, v13, {S(sT3)}
    s_lshr_b32 {S(sT3)}, {S(sW)}, 1
    s_lshl_b32 {S(sT3)}, {S(sT3)}, 7
    s_lshl_b32 {S(sT2)}, {S(sT2)}, 2
    s_add_u32 {S(sT3)}, {S(sT3)}, {S(sT2)}
    s_add_u32 {S(sT3)}, {S(sT3)}, {S(sT1)}
    v_add3_u32 v14, v11, v13, {S(sT3)}       ; v voffset
    s_lshl_b32 {S(sT3)}, {S(sW)}, 8
    v_lshlrev_b32 v13, 4, v6
    v_add3_u32 v15, v12, v13, {S(sT3)}
    s_lshl_b32 {S(sT3)}, {S(sW)}, 15
    v_lshlrev_b32 v6, 4, v1
    v_add_u32 v6, {S(sT3)}, v6
    s_cmp_ge_u32 {S(sW)}, 2
    s_cbranch_scc1 EN_K""")
    srd(a, SA, K_WQ, 4194304); a("s_branch EN_QK\nEN_K:"); srd(a, SA, K_WK, 4194304); a("EN_QK:")
    drow = lambda b, hh: [(64*b + 32*hh + 8*((j%4)//2) + 2*(j//4) + j%2) * 8192 for j in range(8)]
    units = []
    for b in range(8):
        for hh in range(2):
            def sink(base, nd, b=b, hh=hh):
                for j in range(2):
                    for r in range(4): perm_to(a, base, nd, j, r, ("v", 120 + 4*j + r), 0)
                    a(f"ds_write_b128 v6, {V(120+4*j,4)} offset:{(b*2+j)*2048 + hh*1024}")
                for j in range(2, 4):
                    for r in range(4): perm_to(a, base, nd, j, r, ("a", b*16 + (j-2)*8 + hh*4 + r), 4 + (r & 1))
            units.append((drow(b, hh), sink))
    load_w(a, units, SA, 8, 4, 16, 6)
    srd(a, SA, K_WV, 4194304)
    units = []
    for b in range(8):
        for hh in range(2):
            def sink(base, nd, b=b, hh=hh):
                for j in range(2):
                    for r in range(4): perm_to(a, base, nd, j, r, ("a", 128 + b*16 + j*8 + hh*4 + r), 4 + (r & 1))
            units.append((drow(b, hh), sink))
    load_w(a, units, SA, 14, 2, 16, 7)
    srd(a, SA, K_WO, 4194304)
    units = []
    for b in range(2):
        for hh in range(2):
            def sink(base, nd, b=b, hh=hh):
                for j in range(8):
                    for r in range(4): perm_to(a, base, nd, j, r, ("v", 128 + (b*8+j)*8 + hh*4 + r), 0)
            units.append(([(64*b + 32*hh + 8*(j//4) + 4*(j%2) + (j%4)//2) * 1024 for j in range(8)], sink))
    a(f"s_lshl_b32 {S(sOFF2)}, {S(sH)}, 17")
    load_w(a, units, SA, 15, 8, 16, 3, sOFF2)
    srd(a, SA, K_MEM0, 8192)
    a(f"""v_lshrrev_b32 v5, 3, v0
    v_lshlrev_b32 v5, 4, v5
    v_and_b32 v7, 7, v0
    v_lshl_add_u32 v5, v7, 10, v5
    buffer_load_dwordx4 v[16:19], v5, {S(SA,4)}, 0 offen
    buffer_load_dwordx4 v[20:23], v5, {S(SA,4)}, 0 offen offset:512
    v_lshlrev_b32 v5, 4, v0
    v_add_u32 v5, {L_MEM}, v5
    s_waitcnt vmcnt(0)
    ds_write_b128 v5, v[16:19]
    ds_write_b128 v5, v[20:23] offset:4096
    v_lshrrev_b32 v16, 4, v1                 ; g
    v_and_b32 v17, 15, v1                    ; c
    v_and_b32 v18, 1, v16                    ; g2
    v_lshrrev_b32 v19, 5, v1                 ; hl
    v_cmp_gt_u32 {S(sMLO,2)}, 8, v17
    v_cmp_le_u32 {S(sMHI,2)}, 8, v17
    v_cmp_gt_u32 {S(sMG2,2)}, 2, v16
    v_mov_b32 v4, 0xeeee
    v_mov_b32 v5, 0x4444
    v_cndmask_b32 v4, v4, v5, {S(sMLO,2)}
    s_and_b64 {S(sM8,2)}, {S(sMLO,2)}, {S(sMG2,2)}
    v_lshlrev_b32 v7, 4, v1
    v_mov_b32 v13, v7
    v_add_u32 v7, {L_KV}, v7
    s_mul_i32 {S(sT0)}, {S(sW)}, 1088
    s_add_u32 {S(sT0)}, {S(sT0)}, {L_QK}
    v_mul_u32_u24 v8, 272, v19
    v_lshl_add_u32 v8, v17, 4, v8
    v_lshl_add_u32 v8, v18, 3, v8
    v_add_u32 v8, {S(sT0)}, v8
    ; tr read addr = L_QK + (c/4)*272 + g*64 + (c%2)*8
    v_lshrrev_b32 v9, 2, v17
    v_mul_u32_u24 v9, 272, v9
    v_lshl_add_u32 v9, v16, 6, v9
    v_and_b32 v5, 1, v17
    v_lshl_add_u32 v9, v5, 3, v9
    v_add_u32 v9, {L_QK}, v9
    s_lshl_b32 {S(sT0)}, {S(sW)}, 9
    s_add_u32 {S(sT0)}, {S(sT0)}, {L_VM}
    v_lshlrev_b32 v10, 3, v1
    v_add_u32 v10, {S(sT0)}, v10
    v_lshlrev_b32 v11, 7, v18
    v_lshl_add_u32 v11, v17, 3, v11
    v_add_u32 v11, {L_VM}, v11
    ; partial store voffset = (8w + c/2)*8192 + h*256 + ((c%2)*4+g2*2+hl)*16
    v_lshrrev_b32 v12, 1, v17
    v_lshlrev_b32 v12, 13, v12
    v_lshl_add_u32 v12, v5, 6, v12
    v_lshl_add_u32 v12, v18, 5, v12
    v_lshl_add_u32 v12, v19, 4, v12
    s_lshl_b32 {S(sT0)}, {S(sW)}, 16
    s_lshl_b32 {S(sT1)}, {S(sH)}, 8
    s_add_u32 {S(sT0)}, {S(sT0)}, {S(sT1)}
    v_add_u32 v12, {S(sT0)}, v12
    s_mul_i32 {S(sPB)}, {S(sL)}, {ENG_STRIDE}
    s_add_u32 {S(sPB)}, {S(sPB)}, {ENG}
    s_add_u32 {S(sMZ)}, {S(sPB)}, {MEMB}
    s_add_u32 {S(sMW)}, {S(sMZ)}, 8192
    s_add_u32 {S(sMR)}, {S(sMW)}, 8192
    s_mul_i32 {S(sKV)}, {S(sL)}, {64*786432}
    s_lshl_b32 {S(sT0)}, {S(sH)}, 13
    s_add_u32 {S(sKV)}, {S(sKV)}, {S(sT0)}
    s_sub_u32 {S(sT0)}, {S(sW)}, 1
    s_lshl_b32 {S(sT0)}, {S(sT0)}, 18
    s_add_u32 {S(sKV)}, {S(sKV)}, {S(sT0)}
    s_add_u32 {S(sKV)}, {S(sKV)}, {QKV}
    s_lshl_b32 {S(sKVM)}, {S(sL)}, 23
    s_lshl_b32 {S(sT0)}, {S(sH)}, 12
    s_add_u32 {S(sKVM)}, {S(sKVM)}, {S(sT0)}
    s_add_u32 {S(sKVM)}, {S(sKVM)}, {KVM}
    s_lshl_b32 {S(sFLG)}, {S(sL)}, 16
    s_lshr_b32 {S(sT0)}, {S(sH)}, 1
    s_lshl_b32 {S(sT0)}, {S(sT0)}, 6
    s_add_u32 {S(sFLG)}, {S(sFLG)}, {S(sT0)}
    s_mov_b32 {S(sSIG)}, -1
    s_mov_b32 {S(sS)}, 0
    s_mov_b32 {S(sTAG)}, 1
    s_cmp_ge_u32 {S(sW)}, 2
    s_cbranch_scc1 EN_S23
    ; pollers: v13 = h*8192 + (lane/8)*256 + p*128 + (lane%8)*16 ; v14 mem store ; v15 poll2 ; v0 lds write
    v_lshrrev_b32 v13, 3, v1
    v_lshlrev_b32 v13, 8, v13
    v_and_b32 v5, 7, v1
    v_lshl_add_u32 v13, v5, 4, v13
    s_lshl_b32 {S(sT0)}, {S(sH)}, 13
    s_lshl_b32 {S(sT1)}, {S(sW)}, 7
    s_add_u32 {S(sT0)}, {S(sT0)}, {S(sT1)}
    v_add_u32 v13, {S(sT0)}, v13
    v_bfe_u32 v14, v1, 2, 1
    v_lshlrev_b32 v14, 7, v14
    v_bfe_u32 v5, v1, 1, 1
    v_lshl_add_u32 v14, v5, 6, v14
    v_lshl_add_u32 v14, v18, 4, v14
    v_and_b32 v5, 1, v1
    v_lshl_add_u32 v14, v5, 3, v14
    s_lshl_b32 {S(sT0)}, {S(sH)}, 8
    s_lshl_b32 {S(sT1)}, {S(sW)}, 5
    s_add_u32 {S(sT0)}, {S(sT0)}, {S(sT1)}
    v_add_u32 v14, {S(sT0)}, v14
    s_lshl_b32 {S(sT0)}, {S(sW)}, 12
    v_lshlrev_b32 v15, 4, v1
    v_add_u32 v15, {S(sT0)}, v15
    v_add_u32 v0, {L_MEM}, v15
    s_branch EN_S4
EN_S23:
    v_and_b32 v14, 7, v1
    v_lshlrev_b32 v14, 4, v14
    v_lshl_add_u32 v14, v16, 7, v14
    v_add_u32 v15, {L_VM}, v13
EN_S4:
    v_lshlrev_b32 v5, 2, v1
EN_F1:
    buffer_load_dword v3, v5, {S(SB,4)}, 0 offen sc1
    s_waitcnt vmcnt(0)
    v_readlane_b32 {S(sT0)}, v3, {S(sL)}
    v_readlane_b32 {S(sT1)}, v3, 8
    s_mov_b32 {S(sFAST)}, 1
    s_cmp_ge_u32 {S(sT0)}, 32
    s_cbranch_scc1 EN_F2
    s_mov_b32 {S(sFAST)}, 0
    s_cmp_ge_u32 {S(sT1)}, 256
    s_cbranch_scc1 EN_F3""")
    timeout_check(a, end)
    a(f"""s_branch EN_F1
EN_F3:
    buffer_load_dword v3, v5, {S(SB,4)}, 0 offen sc1
    s_waitcnt vmcnt(0)
    v_readlane_b32 {S(sT0)}, v3, {S(sL)}
    s_cmp_ge_u32 {S(sT0)}, 32
    s_cselect_b32 {S(sFAST)}, 1, 0
EN_F2:
    v_mov_b32 v3, 0""")
    RING = 64
    def prep():
        for b in range(4):
            for q in range(4): a(f"ds_read_b128 {V(RING+b*16+q*4,4)}, v6 offset:{b*4096+q*1024}")
        for i in range(16): a(f"v_mov_b32 {V(16+i)}, 0")
    def kv_fetch(tag):
        a(f"""EN_KV{tag}:
        v_readfirstlane_b32 {S(sT0)}, v3
        s_lshr_b32 {S(sT0)}, {S(sT0)}, 8
        s_cmp_eq_u32 {S(sT0)}, 2
        s_cbranch_scc1 EN_KVG{tag}
        buffer_load_dword v3, v2, {S(SWS,4)}, {S(sFLG)} offen sc1""")
        timeout_check(a, end)
        a(f"s_waitcnt vmcnt(0)\ns_branch EN_KV{tag}\nEN_KVG{tag}:")
        a(f"s_sub_u32 {S(sT0)}, {S(sW)}, 2\ns_lshl_b32 {S(sT0)}, {S(sT0)}, 13\ns_add_u32 {S(sT0)}, {S(sT0)}, {L_KV}\ns_add_u32 {S(sT1)}, {S(sKV)}, 4096")
        for i in range(8):
            if i % 4 == 0: a(f"s_mov_b32 m0, {S(sT0)}\ns_add_u32 {S(sT0)}, {S(sT0)}, 4096")
            a(f"buffer_load_dwordx4 v13, {S(SWS,4)}, {S(sKV if i < 4 else sT1)} offen offset:{(i%4)*1024} sc1 lds")
        a(f"s_add_u32 {S(sKV)}, {S(sKV)}, 786432\ns_add_u32 {S(sFLG)}, {S(sFLG)}, 1024")
    def trread(dst, mat, ks):
        for x in range(2):
            a(f"ds_read_b64_tr_b16 {V(dst+ks*4+x*2,2)}, v9 offset:{mat*2176 + (ks//2)*1088 + (2*(ks%2)+x)*16}")
    def publish():
        a(f"s_cmp_eq_u32 {S(sW)}, 3\ns_cbranch_scc1 EN_P3")
        for ks in range(4): trread(32, 1, ks)
        a(f"s_waitcnt lgkmcnt(0)\ns_mov_b64 exec, {S(sMLO,2)}")
        for ks in range(4): a(f"buffer_store_dwordx4 {V(32+4*ks,4)}, v14, {S(SWS,4)}, {S(sKVM)} offen offset:{ks*512} sc1")
        a(f"s_mov_b64 exec, -1\ns_branch EN_P4\nEN_P3:\nds_read_b128 v[32:35], v15\nds_read_b128 v[36:39], v15 offset:1024\ns_waitcnt lgkmcnt(0)")
        for i in range(2): a(f"buffer_store_dwordx4 {V(32+4*i,4)}, v13, {S(SWS,4)}, {S(sKVM)} offen offset:{2048+i*1024} sc1")
        a(f"EN_P4:\ns_add_u32 {S(sKVM)}, {S(sKVM)}, 131072")
    def sig():
        a(f"s_mov_b64 exec, 1\nv_mov_b32 v5, 1\nbuffer_atomic_add v5, v2, {S(SWS,4)}, {S(sSIG)} offen\ns_mov_b64 exec, -1")
    def store2(txt):
        l1 = a.label("EN_ss"); l2 = a.label("EN_ss")
        a(f"s_cmp_eq_u32 {S(sFAST)}, 0\ns_cbranch_scc1 {l1}")
        a(txt.replace("@", "")); a(f"s_branch {l2}\n{l1}:"); a(txt.replace("@", " sc1")); a(f"{l2}:")
    a(f"s_waitcnt lgkmcnt(0)\ns_cmp_lt_u32 {S(sW)}, 2\ns_cbranch_scc1 EN_I1")
    kv_fetch("A")
    a("EN_I1:")
    prep()
    a("EN_STEP:\ns_waitcnt lgkmcnt(0)\ns_barrier")
    MEMF = 32
    for b in range(8): a(f"ds_read_b128 {V(MEMF+4*b,4)}, v7 offset:{L_MEM-L_KV+b*1024}")
    nd = 8
    done_at = {("m", b): b + 1 for b in range(8)}
    for b in range(8):
        needs = [done_at[("m", b)]] + ([done_at[("r", b)]] if b >= 4 else [])
        a(f"s_waitcnt lgkmcnt({min(15, nd - done_at[('m', b)])})")
        for j in (2, 3): a(f"{SM} {V(16+4*j,4)}, {V(MEMF+4*b,4)}, {A(b*16+(j-2)*8,8)}, v4")
        if b >= 4: a(f"s_waitcnt lgkmcnt({min(15, nd - max(needs))})")
        for j in (0, 1): a(f"{SM} {V(16+4*j,4)}, {V(MEMF+4*b,4)}, {V(RING+(b%4)*16+j*8,8)}, v4")
        if b < 4:
            for q in range(4): a(f"ds_read_b128 {V(RING+b*16+q*4,4)}, v6 offset:{(b+4)*4096+q*1024}")
            nd += 4; done_at[("r", b + 4)] = nd
        if b == 5:
            for i in range(8): a(f"v_mov_b32 {V(64+i)}, 0")
    post = []
    for pr in range(2):
        x, y = 16 + 8*pr, 20 + 8*pr
        for i in range(4): post.append(f"v_permlane32_swap_b32 {V(x+i)}, {V(y+i)}")
        for i in range(4): post.append(f"v_add_f32 {V(x+i)}, {V(x+i)}, {V(y+i)}")
        post.append(f"v_cvt_pk_bf16_f32 {V(y)}, {V(x)}, {V(x+1)}"); post.append(f"v_cvt_pk_bf16_f32 {V(y+1)}, {V(x+2)}, {V(x+3)}")
        post.append(f"ds_write_b64 v8, {V(y,2)} offset:{pr*544}")
    post = post[11:] + post[:11]
    vm = [f"{SM} {V(64+4*j,4)}, {V(MEMF+4*b,4)}, {A(128+b*16+j*8,8)}, v4" for b in range(8) for j in range(2)]
    for i in range(4): a(vm[i])
    k = 4
    while post:
        for _ in range(3):
            if post: a(post.pop(0))
        a(vm[k]); k += 1
    a(f"s_cmp_lt_u32 {S(sW)}, 2\ns_cbranch_scc1 EN_B1\ns_waitcnt vmcnt(0)\ns_cmp_eq_u32 {S(sSIG)}, -1\ns_cbranch_scc1 EN_B1a")
    sig()
    a(f"EN_B1a:\nbuffer_load_dword v3, v2, {S(SWS,4)}, {S(sFLG)} offen sc1\nEN_B1:")
    a("s_waitcnt lgkmcnt(0)\ns_barrier")
    Q, KM, K0, K1, Sx = 72, 88, 16, 104, 120
    for ks in range(4):
        trread(Q, 0, ks)
        a(f"ds_read_b128 {V(K0+4*ks,4)}, v7 offset:{ks*1024}\nds_read_b128 {V(K1+4*ks,4)}, v7 offset:{4096+ks*1024}")
        trread(KM, 1, ks)
        if k < 16: a(vm[k]); k += 1
    while k < 16: a(vm[k]); k += 1
    Sx = 32
    for ks in range(4):
        a(f"s_waitcnt lgkmcnt({min(15, 6*(3-ks)) + (4 if ks == 3 else 0)})")
        for n, kb in enumerate((K0, K1, KM)):
            acc = V(Sx+4*n, 4)
            a(f"{MF} {acc}, {V(kb+4*ks,4)}, {V(Q+4*ks,4)}, {'0' if ks == 0 else acc}")
        if ks == 2:
            for t in range(4): a(f"ds_read_b128 {V(48+4*t,4)}, v7 offset:{8192+t*1024}")
    for i in range(4): a(f"v_permlane32_swap_b32 {V(64+i)}, {V(68+i)}")
    for i in range(4): a(f"v_add_f32 {V(64+i)}, {V(64+i)}, {V(68+i)}")
    a("v_cvt_pk_bf16_f32 v68, v64, v65\nv_cvt_pk_bf16_f32 v69, v66, v67\nds_write_b64 v10, v[68:69]")
    for t in range(4, 8): a(f"ds_read_b128 {V(16+4*(t-4),4)}, v7 offset:{8192+t*1024}")
    VX = lambda t: 48 + 4*t if t < 4 else 16 + 4*(t-4)
    a("v_mov_b32 v44, 0xff800000")
    for n in range(4): a(f"v_cndmask_b32 {V(Sx+8+n)}, v44, {V(Sx+8+n)}, {S(sMG2,2)}")
    t = 44
    a(f"v_max3_f32 {V(t)}, {V(Sx)}, {V(Sx+1)}, {V(Sx+2)}")
    for i in range(3, 11, 2): a(f"v_max3_f32 {V(t)}, {V(t)}, {V(Sx+i)}, {V(Sx+i+1)}")
    a(f"v_max_f32 {V(t)}, {V(t)}, {V(Sx+11)}")
    xmax(a, t, t+1, (4, 5))
    a("s_waitcnt lgkmcnt(0)\ns_barrier")
    a(f"s_cmp_eq_u32 {S(sS)}, 63\ns_cbranch_scc1 EN_LAST")
    VM, PL, PH, PM, O = 72, 88, 92, 96, 104
    for p in range(4): a(f"ds_read2_b64 {V(VM+4*p,4)}, v11 offset0:{64*p} offset1:{64*p+32}")
    a(f"v_mul_f32 {V(t)}, s45, {V(t)}")
    for i in range(12): a(f"v_fma_f32 {V(Sx+i)}, {V(Sx+i)}, s45, -{V(t)}")
    for i in range(12):
        a(f"v_exp_f32 {V(Sx+i)}, {V(Sx+i)}\nv_mov_b32 {V(PL+i)}, 0")
    a(f"s_mov_b64 exec, {S(sMLO,2)}")
    for i in range(4): pk(a, PL+i, Sx+2*i, Sx+2*i+1)
    for i in range(2): pk(a, PM+i, Sx+8+2*i, Sx+9+2*i)
    a(f"s_mov_b64 exec, {S(sMHI,2)}")
    for i in range(4): pk(a, PH+i, Sx+2*i, Sx+2*i+1)
    for i in range(2): pk(a, PM+2+i, Sx+8+2*i, Sx+9+2*i)
    a("s_mov_b64 exec, -1\ns_nop 1")
    side = [f"v_add_f32 {V(t)}, {V(Sx)}, {V(Sx+1)}", f"v_add_f32 {V(t+1)}, {V(Sx+2)}, {V(Sx+3)}"]
    for i in range(4, 12, 2): side += [f"v_add_f32 {V(t)}, {V(t)}, {V(Sx+i)}", f"v_add_f32 {V(t+1)}, {V(t+1)}, {V(Sx+i+1)}"]
    side += [f"v_add_f32 {V(t)}, {V(t)}, {V(t+1)}"]
    for b in (16, 32): side += [f"v_mov_b32 {V(t+1)}, {V(t)}", f"v_permlane{b}_swap_b32 {V(t)}, {V(t+1)}", f"v_add_f32 {V(t)}, {V(t)}, {V(t+1)}"]
    side += [f"v_rcp_f32 {V(t)}, {V(t)}"]
    pv = [f"{MF} {V(O+4*p,4)}, {V(VX(2*p),4)}, {V(PL,4)}, 0" for p in range(4)]
    pv += [f"{MF} {V(O+4*p,4)}, {V(VX(2*p+1),4)}, {V(PH,4)}, {V(O+4*p,4)}" for p in range(4)]
    pv += ["s_waitcnt lgkmcnt(0)"] + [f"{MF} {V(O+4*p,4)}, {V(VM+4*p,4)}, {V(PM,4)}, {V(O+4*p,4)}" for p in range(4)]
    for m in pv:
        a(m)
        for _ in range(2):
            if side: a(side.pop(0))
    WA = lambda j: (48 + 4*j) if j < 4 else (16 + 4*(j-4))
    for i in range(16): a(f"v_mov_b32 {V(48+i)}, 0")
    for i in range(16): a(f"v_mov_b32 {V(16+i)}, 0")
    OF = 64
    for i in range(16): a(f"v_mul_f32 {V(O+i)}, {V(O+i)}, {V(t)}")
    for i in range(8): pk(a, OF+i, O+2*i, O+2*i+1)
    G = 32
    def wpost(j):
        r = [f"v_permlane32_swap_b32 {V(WA(j)+i)}, {V(WA(j+4)+i)}" for i in range(4)]
        r += [f"v_add_f32 {V(WA(j)+i)}, {V(WA(j)+i)}, {V(WA(j+4)+i)}" for i in range(4)]
        if j % 2: r += [f"v_cvt_pk_bf16_f32 {V(G+4*(i//2)+2*(i%2)+j//2)}, {V(WA(j-1)+i)}, {V(WA(j)+i)}" for i in range(4)]
        if j == 1: r += [f"v_and_or_b32 {V(G+4*ip)}, {V(G+4*ip)}, -2, {S(sTAG)}" for ip in range(2)]
        return r
    side = []
    for j in range(4):
        for n, (b, jt) in enumerate(((0, j), (0, j+4), (1, j), (1, j+4))):
            a(f"{SM} {V(WA(jt),4)}, {V(OF+4*b,4)}, {V(128+(b*8+jt)*8,8)}, v4")
            if j >= 2 and n == 0: side += wpost(j - 2)
            for _ in range(3):
                if side: a(side.pop(0))
    side += wpost(2) + wpost(3)
    for x in side: a(x)
    store2("\n".join(f"buffer_store_dwordx4 {V(G+4*ip,4)}, v12, {S(SWS,4)}, {S(sPB)} offen offset:{ip*128}@" for ip in range(2)))
    a(f"s_cmp_lt_u32 {S(sW)}, 2\ns_cbranch_scc1 EN_POLL")
    a(f"s_sub_u32 {S(sSIG)}, {S(sFLG)}, 1024\ns_waitcnt vmcnt(2)")
    kv_fetch("B")
    publish()
    prep()
    a("s_branch EN_NEXT\nEN_POLL:")
    prep()
    a(f"""v_and_b32 v52, 15, v1
    v_and_b32 v53, 1, v1
    v_lshlrev_b32 v53, 4, v53
    v_mov_b32 v54, 0x3f80
    v_lshlrev_b32 v53, v53, v54
    v_lshrrev_b32 v52, 1, v52
    v_mov_b32 v56, -1
    v_mov_b32 v57, -1
    s_add_u32 {S(sT2)}, {S(sPB)}, 4096""")
    for r in range(4): a(f"v_cmp_eq_u32 vcc, {r}, v52\nv_cndmask_b32 {V(48+r)}, 0, v53, vcc")
    for _ in range(DELAY1): a("s_nop 15")
    a(f"s_mov_b32 {S(sT3)}, 0\nEN_P1:")
    for i in range(4): a(f"buffer_load_dwordx4 {V(32+4*i,4)}, v13, {S(SWS,4)}, {S(sPB if i < 2 else sT2)} offen offset:{(i%2)*2048} sc1")
    for i in range(4):
        a(f"s_waitcnt vmcnt({3-i})\n{MF} v[52:55], v[48:51], {V(32+4*i,4)}, {'0' if i == 0 else 'v[52:55]'}\nv_xor_b32 {V(58+i)}, {S(sTAG)}, {V(32+4*i)}")
    a(f"""v_or3_b32 v58, v58, v59, v60
    v_or_b32 v58, v58, v61
    v_and_b32 v58, 1, v58
    v_cmp_ne_u32 vcc, 0, v58
    s_cbranch_vccz EN_P1d
    s_add_u32 {S(sT3)}, {S(sT3)}, 1
    s_and_b32 {S(sT0)}, {S(sT3)}, 255
    s_cbranch_scc1 EN_P1""")
    timeout_check(a, end)
    a("s_branch EN_P1\nEN_P1d:\ns_nop 2")
    for i in range(4): a(f"v_add_f32_dpp {V(52+i)}, {V(52+i)}, {V(52+i)} row_ror:8 row_mask:0xf bank_mask:0xf")
    a(f"v_cvt_pk_bf16_f32 v52, v52, v53\nv_cvt_pk_bf16_f32 v53, v54, v55\ns_mov_b64 exec, {S(sM8,2)}")
    store2(f"buffer_store_dwordx2 v[52:53], v14, {S(SWS,4)}, {S(sMW)} offen@\nbuffer_store_dwordx2 v[56:57], v14, {S(SWS,4)}, {S(sMZ)} offen@")
    a("s_mov_b64 exec, -1")
    for _ in range(DELAY2): a("s_nop 15")
    a(f"s_mov_b32 {S(sT3)}, 0\nEN_P2:")
    for i in range(4): a(f"buffer_load_dwordx4 {V(32+4*i,4)}, v15, {S(SWS,4)}, {S(sMW)} offen offset:{i*1024} sc1")
    for i in range(4):
        a(f"s_waitcnt vmcnt({3-i})\nds_write_b128 v0, {V(32+4*i,4)} offset:{i*1024}\nv_max_u32 {V(58+i)}, {V(32+4*i)}, {V(34+4*i)}")
    a(f"""v_max3_u32 v58, v58, v59, v60
    v_max_u32 v58, v58, v61
    v_cmp_eq_u32 vcc, -1, v58
    s_cbranch_vccz EN_NEXT
    s_add_u32 {S(sT3)}, {S(sT3)}, 1
    s_and_b32 {S(sT0)}, {S(sT3)}, 255
    s_cbranch_scc1 EN_P2""")
    timeout_check(a, end)
    a(f"""s_branch EN_P2
EN_NEXT:
    s_mov_b32 {S(sT0)}, {S(sMZ)}
    s_mov_b32 {S(sMZ)}, {S(sMW)}
    s_mov_b32 {S(sMW)}, {S(sMR)}
    s_mov_b32 {S(sMR)}, {S(sT0)}
    s_xor_b32 {S(sTAG)}, {S(sTAG)}, 1
    s_add_u32 {S(sS)}, {S(sS)}, 1
    s_branch EN_STEP
EN_LAST:
    s_cmp_lt_u32 {S(sW)}, 2
    s_cbranch_scc1 {end}
    s_sub_u32 {S(sSIG)}, {S(sFLG)}, 1024""")
    n0 = len(a.out)
    publish()
    a.out[n0:] = [x.replace("EN_P3", "EN_P3L").replace("EN_P4", "EN_P4L") for x in a.out[n0:]]
    a("s_waitcnt vmcnt(0)")
    sig()
```

```python
from common import *
def dmap0(kk): return 128 * (kk // 4) + 8 * (kk % 4)
def cnt_s(a, dst, l, cur, kind, shift=0):
    if shift: a(f"s_lshr_b32 {S(dst)}, {S(cur)}, {shift}\ns_lshl_b32 {S(dst)}, {S(dst)}, 8")
    else: a(f"s_lshl_b32 {S(dst)}, {S(cur)}, 8")
    a(f"s_add_u32 {S(dst)}, {S(dst)}, {CNT_S + l*64*256 + kind*64}")
def load_seg(a, base, code, v0):
    a(f"s_lshl_b32 {S(sT0)}, {S(code)}, 15\ns_add_u32 {S(sT0)}, {S(sT0)}, {base}")
    for i in range(8):
        a(f"buffer_load_dwordx4 {V(v0+4*i,4)}, v7, {S(SWS,4)}, {S(sT0)} offen sc1")
        if i < 7: a(f"s_add_u32 {S(sT0)}, {S(sT0)}, 4096")
def stage_seg(a, v0):
    a(f"s_lshl_b32 {S(sT0)}, {S(sTOG)}, 15\nv_add_u32 v5, {S(sT0)}, v7\nv_add_u32 v8, {S(sT0)}, v9")
    for i in range(8): a(f"ds_write_b128 v5, {V(v0+4*i,4)} offset:{i*4096}")
def pk(a, d, lo, hi): a(f"v_cvt_pk_bf16_f32 {V(d)}, {V(lo)}, {V(hi)}")

class QKVRole(Role):
    R = 2; prefer = 1; NL = 8; NS = 4; expect = 4
    def __init__(s, isv): s.isv = isv; s.name = "RV" if isv else "RQK"
    def flag_off(s, a, dst, l, cur): cnt_s(a, dst, l, cur, 0)
    def prologue(s, a):
        a(f"""v_lshlrev_b32 v7, 4, v0
        v_lshlrev_b32 v9, 4, v1
        s_lshr_b32 {S(sT1)}, {S(sW)}, 1
        s_lshl_b32 {S(sT2)}, s41, 1
        s_add_u32 {S(sT1)}, {S(sT1)}, {S(sT2)}        ; head
        s_and_b32 {S(sT2)}, {S(sW)}, 1                ; u
        s_lshl_b32 {S(sOFF)}, s40, 5
        s_add_u32 {S(sOFF)}, {S(sOFF)}, {S(sT1)}
        s_lshl_b32 {S(sOFF)}, {S(sOFF)}, 13
        s_lshl_b32 {S(sT3)}, {S(sT2)}, {12 if s.isv else 11}
        s_add_u32 {S(sOFF)}, {S(sOFF)}, {S(sT3)}
        s_add_u32 {S(sOFF)}, {S(sOFF)}, {QKV}
        s_lshl_b32 {S(sT1)}, {S(sT1)}, 8
        s_lshl_b32 {S(sT2)}, {S(sT2)}, 7
        s_add_u32 {S(sT1)}, {S(sT1)}, {S(sT2)}
        v_lshrrev_b32 v5, 4, v1
        v_lshlrev_b32 v5, 18, v5                      ; g*32 rows*8192
        v_and_b32 v6, 15, v1
        v_lshlrev_b32 v6, 3, v6
        v_add3_u32 v8, v5, v6, {S(sT1)}""")
        units = []
        for kk in range(16):
            def sink(base, nd, kk=kk):
                for j in range(4):
                    for r in range(4): perm_to(a, base, nd, j, r, ("a", kk*16 + j*4 + r), 5 + (r & 1))
            units.append(([(dmap0(kk) + jj) * 8192 for jj in range(8)], sink))
        load_w(a, units, SA, 8, 4, 16, 6)
    def loads(s, a, code): load_seg(a, XN, code, 10)
    def stage(s, a): stage_seg(a, 10)
    def mm(s, a, k0, k1):
        rd = lambda kk: [a(f"ds_read_b128 {V(80+(kk%4)*8+tt*4,4)}, v8 offset:{tt*16384+kk*1024}") for tt in range(2)]
        for kk in range(k0, min(k0 + 3, k1)): rd(kk)
        for kk in range(k0, k1):
            a(f"s_waitcnt lgkmcnt({2*(min(kk+3,k1)-kk-1)})")
            for tt in range(2):
                for j in range(4):
                    acc = V(48 + tt*16 + j*4, 4); w = A(kk*16 + j*4, 4); x = V(80+(kk%4)*8+tt*4, 4)
                    c = "0" if kk == 0 else acc
                    a(f"v_mfma_f32_16x16x32_bf16 {acc}, {x if s.isv else w}, {w if s.isv else x}, {c}")
                if tt == 0 and kk + 3 < k1: rd(kk + 3)
    def compute1(s, a): s.mm(a, 0, 8)
    def compute2(s, a): s.mm(a, 8, 16)
    def stores(s, a):
        a(f"s_mul_i32 {S(sT0)}, {S(sCUR)}, 786432\ns_add_u32 {S(sT0)}, {S(sT0)}, {S(sOFF)}\ns_add_u32 {S(sT1)}, {S(sT0)}, 4096")
        D = lambda tt, j, i: 48 + tt*16 + j*4 + i
        for n in range(4):
            p = 112 + 4*n
            if s.isv:
                pk(a, p, D(0,n,0), D(0,n,1)); pk(a, p+1, D(0,n,2), D(0,n,3)); pk(a, p+2, D(1,n,0), D(1,n,1)); pk(a, p+3, D(1,n,2), D(1,n,3))
                a(f"buffer_store_dwordx4 {V(p,4)}, v9, {S(SWS,4)}, {S(sT0)} offen offset:{n*1024} sc1")
            else:
                tt, v = n // 2, n % 2
                pk(a, p, D(tt,0,2*v), D(tt,1,2*v)); pk(a, p+1, D(tt,2,2*v), D(tt,3,2*v))
                pk(a, p+2, D(tt,0,2*v+1), D(tt,1,2*v+1)); pk(a, p+3, D(tt,2,2*v+1), D(tt,3,2*v+1))
                a(f"buffer_store_dwordx4 {V(p,4)}, v9, {S(SWS,4)}, {S(sT0+tt)} offen offset:{v*1024} sc1")
    def signal(s, a, sk):
        a(f"s_lshl_b32 {S(sT0)}, {S(sPEND)}, 4\ns_add_u32 {S(sT0)}, {S(sT0)}, s41\ns_lshl_b32 {S(sT0)}, {S(sT0)}, 6")
        a(f"s_cmp_eq_u32 s40, 0\ns_cselect_b32 {S(sT1)}, 1, 0x100\nv_mov_b32 v5, {S(sT1)}")

def ln_part1(a, X, t, ldsaddr):
    a(f"v_add_f32 {V(t)}, {V(X)}, {V(X+1)}")
    for i in range(2, 16): a(f"v_add_f32 {V(t)}, {V(t)}, {V(X+i)}")
    xsum(a, t, t+1, (3, 4, 5))
    a(f"ds_write_b32 {V(ldsaddr)}, {V(t)}")
def ln_gather(a, t, rdaddr, off):
    for w in range(4): a(f"ds_read_b32 {V(t+w)}, {V(rdaddr)} offset:{off+w*32}")
    a(f"s_waitcnt lgkmcnt(0)\nv_add_f32 {V(t)}, {V(t)}, {V(t+1)}\nv_add_f32 {V(t+2)}, {V(t+2)}, {V(t+3)}\nv_add_f32 {V(t)}, {V(t)}, {V(t+2)}")
def ln_part2(a, X, t, ldsaddr, rdaddr):
    ln_gather(a, t, rdaddr, 0)
    a(f"v_mul_f32 {V(t)}, 0x3b000000, {V(t)}")
    for i in range(16): a(f"v_sub_f32 {V(X+i)}, {V(X+i)}, {V(t)}")
    a(f"v_mul_f32 {V(t)}, {V(X)}, {V(X)}")
    for i in range(1, 16): a(f"v_fmac_f32 {V(t)}, {V(X+i)}, {V(X+i)}")
    xsum(a, t, t+1, (3, 4, 5))
    a(f"ds_write_b32 {V(ldsaddr)}, {V(t)} offset:128")
def ln_part3(a, X, t, rdaddr, P):
    ln_gather(a, t, rdaddr, 128)
    a(f"v_mov_b32 {V(t+1)}, 0x3727c5ac\nv_fmac_f32 {V(t+1)}, 0x3b000000, {V(t)}\nv_rsq_f32 {V(t)}, {V(t+1)}")
    for i in range(16): a(f"v_mul_f32 {V(X+i)}, {V(X+i)}, {V(t)}")
    for i in range(8): pk(a, P+i, X+2*i, X+2*i+1)
def unpack(a, X, P, n, add=False):
    for i in range(n):
        a(f"v_lshlrev_b32 {V(X+2*i)}, 16, {V(P+i)}\nv_and_b32 {V(X+2*i+1)}, 0xffff0000, {V(P+i)}")
def af_lane_setup(a):
    a(f"""v_lshrrev_b32 v5, 4, v1                 ; g
    v_bfe_u32 v6, v1, 3, 1                   ; ih
    v_and_b32 v10, 7, v1                     ; c8
    v_lshlrev_b32 v7, 8, v5
    v_lshl_add_u32 v7, v6, 10, v7
    v_lshl_add_u32 v7, v10, 4, v7
    s_lshl_b32 {S(sT0)}, {S(sW)}, 12
    v_add_u32 v7, {S(sT0)}, v7
    v_lshlrev_b32 v8, 6, v5
    v_lshl_add_u32 v8, v6, 4, v8
    v_lshl_add_u32 v8, v10, 10, v8
    s_lshl_b32 {S(sT0)}, {S(sW)}, 8
    v_add_u32 v8, {S(sT0)}, v8
    v_lshlrev_b32 v10, 2, v10
    s_lshl_b32 {S(sT0)}, {S(sW)}, 5
    v_add_u32 v9, {S(sT0)}, v10""")
def af_item_off(a, dst, code, segbytes, tmp):
    a(f"""s_lshr_b32 {S(dst)}, {S(code)}, 2
    s_mul_i32 {S(dst)}, {S(dst)}, {segbytes}
    s_bfe_u32 {S(tmp)}, {S(code)}, 0x10001
    s_lshl_b32 {S(tmp)}, {S(tmp)}, 14
    s_add_u32 {S(dst)}, {S(dst)}, {S(tmp)}
    s_and_b32 {S(tmp)}, {S(code)}, 1
    s_lshl_b32 {S(tmp)}, {S(tmp)}, 7
    s_add_u32 {S(dst)}, {S(dst)}, {S(tmp)}""")

def gen_init(a):
    a(f"s_cmp_ge_u32 s2, 256\ns_cbranch_scc1 INIT_END")
    srd(a, SWS, K_WS, WS_BYTES); srd(a, SA, K_X, 2097152)
    a(f"v_and_b32 v1, 63, v0\nv_lshrrev_b32 v5, 6, v0\nv_readfirstlane_b32 {S(sW)}, v5")
    af_lane_setup(a)
    a(f"s_lshl_b32 {S(sT0)}, s2, 13")
    a(f"buffer_load_dwordx4 v[12:15], v8, {S(SA,4)}, {S(sT0)} offen\nbuffer_load_dwordx4 v[16:19], v8, {S(SA,4)}, {S(sT0)} offen offset:32")
    a(f"""v_mov_b32 v40, 0
    v_mov_b32 v41, 0
    v_mov_b32 v42, 0
    v_mov_b32 v43, 0
    v_lshlrev_b32 v44, 4, v1
    s_lshl_b32 {S(sT1)}, s2, 10
    s_cmp_eq_u32 {S(sW)}, 1
    s_cselect_b32 {S(sT2)}, {ENG}, 0
    s_cmp_eq_u32 {S(sW)}, 2
    s_cselect_b32 {S(sT2)}, {ENG+ENG_STRIDE}, {S(sT2)}
    s_add_u32 {S(sT1)}, {S(sT1)}, {S(sT2)}
    s_cmp_eq_u32 {S(sW)}, 3
    s_cbranch_scc1 INIT_W3
    s_cmp_lg_u32 {S(sW)}, 0
    s_cbranch_scc1 INIT_ST
    ; wave0: XN flags of layer 0 (CNT_S + s*256, s<64) preset to 4 : wgs 128..143, lanes with lane%16==0
    s_sub_u32 {S(sT2)}, s2, 128
    s_cmp_ge_u32 {S(sT2)}, 16
    s_cbranch_scc1 INIT_ST
    v_and_b32 v45, 15, v1
    v_cmp_eq_u32 vcc, 0, v45
    v_cndmask_b32 v40, 0, 4, vcc
    s_branch INIT_ST
INIT_W3:
    s_cmp_ge_u32 s2, 48
    s_cbranch_scc1 INIT_NOST
    v_mov_b32 v40, -1
    v_mov_b32 v41, -1
    v_mov_b32 v42, -1
    v_mov_b32 v43, -1
    s_lshl_b32 {S(sT1)}, s2, 10
    s_add_u32 {S(sT2)}, {S(sT1)}, {ENG+ENG_STRIDE+MEMB-24*1024}
    s_add_u32 {S(sT1)}, {S(sT1)}, {ENG+MEMB}
    s_cmp_ge_u32 s2, 24
    s_cselect_b32 {S(sT1)}, {S(sT2)}, {S(sT1)}
INIT_ST:
    buffer_store_dwordx4 v[40:43], v44, {S(SWS,4)}, {S(sT1)} offen
INIT_NOST:
    s_waitcnt vmcnt(0)""")
    af_item_off(a, sOFF, 2, 32768, sT0)
    a(f"s_add_u32 {S(sT0)}, {S(sOFF)}, {XR}")
    a(f"buffer_store_dwordx4 v[12:15], v7, {S(SWS,4)}, {S(sT0)} offen\nbuffer_store_dwordx4 v[16:19], v7, {S(SWS,4)}, {S(sT0)} offen offset:2048")
    unpack(a, 20, 12, 8)
    ln_part1(a, 20, 36, 9); a("s_waitcnt lgkmcnt(0)\ns_barrier")
    ln_part2(a, 20, 36, 9, 10); a("s_waitcnt lgkmcnt(0)\ns_barrier")
    ln_part3(a, 20, 36, 10, 48)
    a(f"s_add_u32 {S(sT0)}, {S(sOFF)}, {XN}")
    a(f"buffer_store_dwordx4 v[48:51], v7, {S(SWS,4)}, {S(sT0)} offen\nbuffer_store_dwordx4 v[52:55], v7, {S(SWS,4)}, {S(sT0)} offen offset:2048")
    a("INIT_END:\ns_endpgm")
```

```python
from roles import *
MF = "v_mfma_f32_16x16x32_bf16"
class RedRole(Role):
    NI = 256; prefer = 0
    def __init__(s, kind, NR):
        s.kind = kind; s.R = NR; s.name = f"RR{kind}"; s.np = 16 if kind == 1 else NFS
        s.expect = s.np; s.NL = 2 * s.np + 2; s.NS = 4 if kind == 1 else 2
    def flag_off(s, a, dst, l, cur): cnt_s(a, dst, l, cur, 1 if s.kind == 1 else 3, 2)
    def prologue(s, a):
        if s.kind == 2: srd(a, SA, K_OUT, 2097152)
        af_lane_setup(a)
        a("""v_lshrrev_b32 v5, 4, v1
        v_bfe_u32 v6, v1, 2, 2
        v_cmp_eq_u32 vcc, v5, v6
        v_and_b32 v5, 1, v1
        v_lshlrev_b32 v5, 4, v5
        v_mov_b32 v6, 0x3f80
        v_lshlrev_b32 v5, v5, v6
        v_cndmask_b32 v5, 0, v5, vcc
        v_and_b32 v6, 2, v1
        v_cmp_eq_u32 vcc, 0, v6
        v_cndmask_b32 v12, 0, v5, vcc
        v_cndmask_b32 v13, v5, 0, vcc
        v_mov_b32 v14, 0
        v_mov_b32 v15, 0
        v_mov_b32 v16, 0
        v_mov_b32 v17, 0
        v_mov_b32 v18, v12
        v_mov_b32 v19, v13""")
    def loads(s, a, code):
        af_item_off(a, sT0, code, 32768, sT1)
        a(f"s_add_u32 {S(sT0)}, {S(sT0)}, {XR if s.kind == 1 else X1}")
        for m in range(2): a(f"buffer_load_dwordx4 {V(64+4*m,4)}, v7, {S(SWS,4)}, {S(sT0)} offen offset:{m*2048} sc1")
        af_item_off(a, sT0, code, 32768 * s.np, sT1)
        a(f"s_add_u32 {S(sT0)}, {S(sT0)}, {P1 if s.kind == 1 else P2}")
        for p in range(s.np):
            for m in range(2): a(f"buffer_load_dwordx4 {V(72+8*p+4*m,4)}, v7, {S(SWS,4)}, {S(sT0)} offen offset:{m*2048} sc1")
            a(f"s_add_u32 {S(sT0)}, {S(sT0)}, 32768")
    def stage(s, a):
        for p in range(s.np + 1):
            for m in range(2):
                for h in range(2):
                    acc = V(20 + 8*m + 4*h, 4)
                    a(f"{MF} {acc}, {V(12+4*h,4)}, {V(64+8*p+4*m,4)}, {'0' if p == 0 else acc}")
        for i in range(8): pk(a, 44+i, 20+2*i, 21+2*i)
        unpack(a, 20, 44, 8)
        ln_part1(a, 20, 36, 9)
    def compute1(s, a): ln_part2(a, 20, 36, 9, 10)
    def compute2(s, a): ln_part3(a, 20, 36, 10, 52)
    def stores(s, a):
        af_item_off(a, sT0, sCUR, 32768, sT1)
        def st(src, base):
            a(f"s_add_u32 {S(sT1)}, {S(sT0)}, {base}")
            for m in range(2): a(f"buffer_store_dwordx4 {V(src+4*m,4)}, v7, {S(SWS,4)}, {S(sT1)} offen offset:{m*2048} sc1")
        if s.kind == 1: st(52, XN1); st(44, X1)
        else:
            a(f"s_cmp_ge_u32 {S(sCUR)}, 256\ns_cbranch_scc1 RR2_OUT")
            st(52, XN + 2097152); st(44, XR + 2097152)
            a(f"s_branch RR2_ST\nRR2_OUT:\ns_sub_u32 {S(sT0)}, {S(sCUR)}, 256\ns_lshl_b32 {S(sT0)}, {S(sT0)}, 13")
            for m in range(2): a(f"buffer_store_dwordx4 {V(44+4*m,4)}, v8, {S(SA,4)}, {S(sT0)} offen offset:{m*32}")
            a("RR2_ST:")
    def signal(s, a, sk):
        if s.kind == 1: cnt_s(a, sT0, 0, sPEND, 2, 2)
        else:
            a(f"s_cmp_ge_u32 {S(sPEND)}, 256\ns_cbranch_scc1 {sk}")
            cnt_s(a, sT0, 1, sPEND, 0, 2)
        a("v_mov_b32 v5, 1")

def out_gemm(a, wbase, nks, acc0, ring, rdaddr, off, k0, k1):
    rd = lambda ks: [a(f"ds_read_b128 {V(ring+(ks%3)*8+tt*4,4)}, {V(rdaddr)} offset:{off+(tt*nks+ks)*1024}") for tt in range(2)]
    for ks in range(k0, min(k0 + 2, k1)): rd(ks)
    for ks in range(k0, k1):
        a(f"s_waitcnt lgkmcnt({2*(min(ks+2,k1)-ks-1)})")
        for tt in range(2):
            for j in range(8):
                acc = V(acc0 + tt*32 + j*4, 4)
                a(f"{MF} {acc}, {A(wbase+ks*32+j*4,4)}, {V(ring+(ks%3)*8+tt*4,4)}, {'0' if ks == 0 else acc}")
            if tt == 0 and ks + 2 < k1: rd(ks + 2)
def out_stores(a, acc0, pkr, nparts):
    a(f"s_mul_i32 {S(sT0)}, {S(sCUR)}, {nparts*32768}\ns_add_u32 {S(sT0)}, {S(sT0)}, {S(sOFF)}\ns_add_u32 {S(sT1)}, {S(sT0)}, 16384")
    for tt in range(2):
        for i in range(4):
            p = pkr + ((tt*4+i) % 4) * 4
            for q in range(4): pk(a, p+q, acc0 + tt*32 + (2*q)*4 + i, acc0 + tt*32 + (2*q+1)*4 + i)
            a(f"buffer_store_dwordx4 {V(p,4)}, v9, {S(SWS,4)}, {S(sT0+tt)} offen offset:{i*1024} sc1")
def load_outw(a, rows0, nks, abase, gmul, soff):
    a(f"""v_lshrrev_b32 v5, 4, v1
    v_mul_u32_u24 v5, {gmul*1024}, v5
    v_and_b32 v6, 15, v1
    v_lshlrev_b32 v6, 4, v6
    s_lshl_b32 {S(sT1)}, {S(sW)}, 8
    v_add3_u32 v8, v5, v6, {S(sT1)}""")
    units = []
    for ks in range(nks):
        def sink(base, nd, ks=ks):
            for j in range(8):
                for r in range(4): perm_to(a, base, nd, j, r, ("a", abase + ks*32 + j*4 + r), 5 + (r & 1))
        units.append(([(rows0(ks) + jj) * 1024 for jj in range(8)], sink))
    load_w(a, units, SA, 8, 8, 16, 4, soff)

class FFRole(Role):
    prefer = 0; NL = 8; NS = 8; expect = 4; name = "RFF"
    def __init__(s, R): s.R = R
    def flag_off(s, a, dst, l, cur): cnt_s(a, dst, l, cur, 2)
    def prologue(s, a):
        a(f"""s_cmp_ge_u32 s44, {NFS}
        s_cselect_b32 {S(sC0)}, 1, 0
        s_cselect_b32 {S(sT0)}, {NFS}, 0
        s_mov_b32 {S(sC1)}, {S(sC0)}
        s_sub_u32 s41, s44, {S(sT0)}
        v_lshlrev_b32 v7, 4, v0
        v_lshlrev_b32 v9, 4, v1
        s_lshl_b32 {S(sOFF)}, s41, 15
        s_lshl_b32 {S(sT0)}, {S(sW)}, 12
        s_add_u32 {S(sOFF)}, {S(sOFF)}, {S(sT0)}
        s_add_u32 {S(sOFF)}, {S(sOFF)}, {P2}
        s_lshl_b32 {S(sT1)}, s41, 8
        s_lshl_b32 {S(sT0)}, {S(sW)}, 6
        s_add_u32 {S(sT1)}, {S(sT1)}, {S(sT0)}
        s_cmp_ge_u32 {S(sT1)}, 2752
        s_cselect_b32 {S(sT1)}, 0x10000000, {S(sT1)}
        v_lshrrev_b32 v5, 4, v1
        v_mul_u32_u24 v5, {32*2752}, v5
        v_and_b32 v6, 15, v1
        v_lshlrev_b32 v6, 2, v6
        v_add3_u32 v8, v5, v6, {S(sT1)}
        s_lshl_b32 {S(sT0)}, {S(sW)}, 10
        v_add_u32 v11, {S(sT0)}, v9
        v_add_u32 v11, 65536, v11
        v_add_u32 v10, 65536, v9""")
        srd(a, SA, K_W1, 512*2752)
        units = []
        for kk in range(16):
            def sink(base, nd, kk=kk):
                for j in range(2):
                    for r in range(4): perm_to(a, base, nd, j, r, ("a", kk*8 + j*4 + r), 5 + (r & 1))
            units.append(([(dmap0(kk) + jj) * 2752 for jj in range(8)], sink))
        load_w(a, units, SA, 8, 2, 16, 7)
        srd(a, SA, K_W2, 1376*1024)
        a(f"s_lshl_b32 {S(sOFF2)}, s41, 17")
        load_outw(a, lambda ks: 32*ks, 4, 128, 8, sOFF2)
    def loads(s, a, code): load_seg(a, XN1, code, 12)
    def stage(s, a): stage_seg(a, 12)
    def compute1(s, a):
        rd = lambda kk: [a(f"ds_read_b128 {V(80+(kk%4)*8+tt*4,4)}, v8 offset:{tt*16384+kk*1024}") for tt in range(2)]
        for kk in range(3): rd(kk)
        for kk in range(16):
            a(f"s_waitcnt lgkmcnt({2*(min(kk+3,16)-kk-1)})")
            for tt in range(2):
                for j in range(2):
                    acc = V(48 + tt*8 + j*4, 4)
                    a(f"{MF} {acc}, {A(kk*8+j*4,4)}, {V(80+(kk%4)*8+tt*4,4)}, {'0' if kk == 0 else acc}")
                if tt == 0 and kk + 3 < 16: rd(kk + 3)
        for i in range(16): a(f"v_mul_f32 {V(64+i)}, 0xbfb8aa3b, {V(48+i)}")
        for i in range(16): a(f"v_exp_f32 {V(64+i)}, {V(64+i)}")
        for i in range(16): a(f"v_add_f32 {V(64+i)}, 1.0, {V(64+i)}")
        for i in range(16): a(f"v_rcp_f32 {V(64+i)}, {V(64+i)}")
        for i in range(16): a(f"v_mul_f32 {V(48+i)}, {V(48+i)}, {V(64+i)}")
        for tt in range(2):
            for i in range(4): pk(a, 64+tt*4+i, 48+tt*8+i, 48+tt*8+4+i)
            a(f"ds_write_b128 v11, {V(64+tt*4,4)} offset:{tt*4096}")
    def compute2(s, a): out_gemm(a, 128, 4, 128, 80, 10, 0, 0, 4)
    def stores(s, a): out_stores(a, 128, 192, NFS)
    def signal(s, a, sk): cnt_s(a, sT0, 0, sPEND, 3); a("v_mov_b32 v5, 1")

SC = 128 ** -0.5 * 1.4426950408889634
import struct
def fbits(x): return "0x%08x" % struct.unpack("<I", struct.pack("<f", x))[0]
def softmax12(a, Sx, t, n=12):
    a(f"v_max3_f32 {V(t)}, {V(Sx)}, {V(Sx+1)}, {V(Sx+2)}")
    for i in range(3, n - 1, 2): a(f"v_max3_f32 {V(t)}, {V(t)}, {V(Sx+i)}, {V(Sx+i+1)}")
    a(f"v_max_f32 {V(t)}, {V(t)}, {V(Sx+n-1)}")
    xmax(a, t, t+1, (4, 5))
    a(f"v_mul_f32 {V(t)}, s45, {V(t)}")
    for i in range(n): a(f"v_fma_f32 {V(Sx+i)}, {V(Sx+i)}, s45, -{V(t)}")
    for i in range(n): a(f"v_exp_f32 {V(Sx+i)}, {V(Sx+i)}")
    a(f"v_add_f32 {V(t)}, {V(Sx)}, {V(Sx+1)}\nv_add_f32 {V(t+1)}, {V(Sx+2)}, {V(Sx+3)}")
    for i in range(4, n, 2): a(f"v_add_f32 {V(t)}, {V(t)}, {V(Sx+i)}\nv_add_f32 {V(t+1)}, {V(t+1)}, {V(Sx+i+1)}")
    a(f"v_add_f32 {V(t)}, {V(t)}, {V(t+1)}")
    xsum(a, t, t+1, (4, 5))
    a(f"v_rcp_f32 {V(t)}, {V(t)}")
class AWRole(Role):
    prefer = 0; NL = 32; NS = 8; expect = 0x205; name = "RAW"
    Q, K, Vx, KM, VM = 16, 32, 64, 96, 112
    def __init__(s, R): s.R = R
    def flag_off(s, a, dst, l, cur):
        a(f"s_lshl_b32 {S(dst)}, {S(cur)}, 4\ns_add_u32 {S(dst)}, {S(dst)}, s41\ns_lshl_b32 {S(dst)}, {S(dst)}, 6\ns_add_u32 {S(dst)}, {S(dst)}, {CNT_H + l*65536}")
    def prologue(s, a):
        a(f"""s_lshr_b32 {S(sC0)}, s44, 4
        s_mov_b32 {S(sC1)}, {S(sC0)}
        s_and_b32 s41, s44, 15
        s_mov_b32 s45, {fbits(SC)}
        v_lshlrev_b32 v9, 4, v1
        s_lshl_b32 {S(sOFF)}, s41, 15
        s_lshl_b32 {S(sT0)}, {S(sW)}, 12
        s_add_u32 {S(sOFF)}, {S(sOFF)}, {S(sT0)}
        s_add_u32 {S(sOFF)}, {S(sOFF)}, {P1}
        s_lshr_b32 s46, {S(sW)}, 1                     ; hh
        s_and_b32 s47, {S(sW)}, 1                      ; tt
        s_lshl_b32 s48, s41, 1
        s_add_u32 s48, s48, s46                        ; head
        v_lshrrev_b32 v5, 4, v1                        ; g
        v_and_b32 v6, 15, v1                           ; c
        v_and_b32 v10, 7, v1
        v_lshlrev_b32 v10, 4, v10
        v_lshl_add_u32 v10, v5, 7, v10
        v_and_b32 v11, 1, v5
        v_lshlrev_b32 v11, 7, v11
        v_lshl_add_u32 v11, v6, 3, v11
        v_cmp_gt_u32 s[50:51], 2, v5
        s_lshl_b32 {S(sT0)}, s47, 4
        v_add_u32 v6, {S(sT0)}, v6
        v_lshlrev_b32 v5, 2, v5
        v_mov_b32 v12, 0xff800000
        v_mov_b32 v13, {fbits(-1e9 * 128 ** 0.5)}
        s_lshl_b32 {S(sT0)}, s47, 13
        s_lshl_b32 {S(sT1)}, s46, 12
        s_add_u32 {S(sT0)}, {S(sT0)}, {S(sT1)}
        v_add_u32 v14, {S(sT0)}, v9""")
        for n in range(8):
            a(f"v_add_u32 v7, {16*(n//4) + n%4}, v5\nv_cmp_le_u32 {S(52+2*n,2)}, v7, v6")
        srd(a, SA, K_WO, 4194304)
        a(f"s_lshl_b32 {S(sOFF2)}, s41, 18")
        load_outw(a, lambda ks: 128*(ks//4) + 64*((ks%4)//2) + 8*(ks%2), 8, 0, 16, sOFF2)
    def loads(s, a, code):
        a(f"""s_mul_i32 {S(sT0)}, {S(code)}, 786432
        s_lshl_b32 {S(sT1)}, s48, 13
        s_add_u32 {S(sT0)}, {S(sT0)}, {S(sT1)}
        s_add_u32 {S(sT0)}, {S(sT0)}, {QKV}
        s_lshl_b32 {S(sT1)}, s47, 12
        s_add_u32 {S(sT1)}, {S(sT1)}, {S(sT0)}
        s_lshl_b32 {S(sT2)}, {S(code)}, 5
        s_add_u32 {S(sT2)}, {S(sT2)}, s48
        s_lshl_b32 {S(sT2)}, {S(sT2)}, 12
        s_add_u32 {S(sT2)}, {S(sT2)}, {KVM}""")
        ld = lambda r, so, o: a(f"buffer_load_dwordx4 {V(r,4)}, v9, {S(SWS,4)}, {S(so)} offen offset:{o} sc1")
        for k in range(4): ld(s.Q + 4*k, sT1, k*1024)
        for k in range(4): a(f"buffer_load_dwordx4 {V(s.KM+4*k,4)}, v10, {S(SWS,4)}, {S(sT2)} offen offset:{k*512} sc1")
        for base, add in ((s.K, 262144), (s.K+16, 4096), (s.Vx, 262144-4096), (s.Vx+16, 4096)):
            a(f"s_add_u32 {S(sT0)}, {S(sT0)}, {add}")
            for k in range(4): ld(base + 4*k, sT0, k*1024)
        for t in range(8): a(f"buffer_load_dwordx2 {V(s.VM+2*t,2)}, v11, {S(SWS,4)}, {S(sT2)} offen offset:{2048+t*256} sc1")
    def stage(s, a):
        Sx = 192
        for k in range(4):
            for n, kb in enumerate((s.K, s.K+16, s.KM)):
                acc = V(Sx+4*n, 4)
                a(f"{MF} {acc}, {V(kb+4*k,4)}, {V(s.Q+4*k,4)}, {'0' if k == 0 else acc}")
        for n in range(8): a(f"v_cndmask_b32 {V(Sx+n)}, v13, {V(Sx+n)}, {S(52+2*n,2)}")
        for n in range(4): a(f"v_cndmask_b32 {V(Sx+8+n)}, v12, {V(Sx+8+n)}, s[50:51]")
        softmax12(a, Sx, 204)
        for i in range(12): a(f"v_mul_f32 {V(Sx+i)}, {V(Sx+i)}, v204")
        for i in range(6): pk(a, 208+i, Sx+2*i, Sx+2*i+1)
        O = 216
        for t in range(8): a(f"{MF} {V(O+4*t,4)}, {V(s.Vx+4*t,4)}, v[208:211], 0")
        for t in range(8): a(f"v_mfma_f32_16x16x16_bf16 {V(O+4*t,4)}, {V(s.VM+2*t,2)}, v[212:213], {V(O+4*t,4)}")
        a(f"s_lshl_b32 {S(sT0)}, {S(sTOG)}, 14\nv_add_u32 v5, {S(sT0)}, v14\nv_add_u32 v8, {S(sT0)}, v9")
        for u in range(2):
            for v in range(2):
                p = 192 + 4*(2*u+v); D = lambda j, i: O + 4*(4*u+j) + i
                pk(a, p, D(0,2*v), D(1,2*v)); pk(a, p+1, D(2,2*v), D(3,2*v)); pk(a, p+2, D(0,2*v+1), D(1,2*v+1)); pk(a, p+3, D(2,2*v+1), D(3,2*v+1))
                a(f"ds_write_b128 v5, {V(p,4)} offset:{(2*u+v)*1024}")
    def compute1(s, a): out_gemm(a, 0, 8, 128, 192, 8, 0, 0, 4)
    def compute2(s, a): out_gemm(a, 0, 8, 128, 192, 8, 0, 4, 8)
    def stores(s, a): out_stores(a, 128, 216, 16)
    def signal(s, a, sk): cnt_s(a, sT0, 0, sPEND, 1); a("v_mov_b32 v5, 1")
```

```python
import sys
from roles import *
from roles2 import *
from engine import *
NAME = "interleave_layers__memory_aug_recurrent_mem_tr__dense_activation_silu__prompt"
NAW, NFF, NR1, NR2 = 3, 2, 14, 12
def dispatcher(a):
    a(f"s_cmp_ge_u32 s2, 256\ns_cbranch_scc1 MAIN_END")
    a(f"s_memrealtime {S(sSTART,2)}")
    srd(a, SWS, K_WS, WS_BYTES); srd(a, SB, K_DBG, 256)
    a(f"""s_getreg_b32 s42, hwreg(HW_REG_XCC_ID, 0, 3)
    v_and_b32 v1, 63, v0
    v_mov_b32 v2, 0
    v_lshrrev_b32 v5, 6, v0
    v_readfirstlane_b32 {S(sW)}, v5
    s_mov_b32 {S(sLO)}, 0x05040100
    s_mov_b32 {S(sHI)}, 0x07060302
    s_cmp_lg_u32 {S(sW)}, 0
    s_cbranch_scc1 D_1
    s_mov_b64 exec, 1
    v_mov_b32 v5, 1
    v_mov_b32 v6, 1
    s_lshl_b32 {S(sT0)}, s42, 2
    buffer_atomic_add v5, v2, {S(SB,4)}, {S(sT0)} offen sc0
    s_waitcnt vmcnt(0)
    buffer_atomic_add v6, v2, {S(SB,4)}, 0 offen offset:32
    ds_write_b32 v2, v5
    s_waitcnt lgkmcnt(0)
    s_mov_b64 exec, -1
D_1:
    s_barrier
    ds_read_b32 v5, v2
    s_waitcnt lgkmcnt(0)
    v_readfirstlane_b32 s43, v5
    s_barrier
    s_lshl_b32 s44, s42, 5
    s_add_u32 s44, s44, s43
    s_cmp_lt_u32 s43, 32
    s_cbranch_scc1 D_ROLE
    v_lshlrev_b32 v6, 2, v1
D_2:
    buffer_load_dword v5, v6, {S(SB,4)}, 0 offen sc1
    s_waitcnt vmcnt(0)
    v_readlane_b32 {S(sT0)}, v5, 8
    s_cmp_ge_u32 {S(sT0)}, 256
    s_cbranch_scc1 D_3
    s_sleep 8""")
    timeout_check(a, "MAIN_END")
    a("s_branch D_2\nD_3:\nbuffer_load_dword v5, v6, s[12:15], 0 offen sc1\ns_waitcnt vmcnt(0)\ns_sub_u32 s43, s43, 32")
    for x in range(8):
        a(f"""v_readlane_b32 {S(sT0)}, v5, {x}
        s_max_u32 {S(sT0)}, {S(sT0)}, 32
        s_sub_u32 {S(sT0)}, {S(sT0)}, 32
        s_cmp_gt_u32 s42, {x}
        s_cselect_b32 {S(sT0)}, {S(sT0)}, 0
        s_add_u32 s43, s43, {S(sT0)}""")
    for x in range(8):
        a(f"""v_readlane_b32 {S(sT0)}, v5, {x}
        s_min_u32 {S(sT0)}, {S(sT0)}, 32
        s_add_u32 s44, {S(sT0)}, {x*32}
        s_add_u32 s44, s44, s43
        s_sub_u32 {S(sT0)}, 32, {S(sT0)}
        s_cmp_lt_u32 s43, {S(sT0)}
        s_cbranch_scc1 D_ROLE
        s_sub_u32 s43, s43, {S(sT0)}""")
    a("s_branch MAIN_END\nD_ROLE:")
    if PROF == 2: a(f"s_lshl_b32 s70, s44, 2\ns_add_u32 s70, s70, {S(sW)}\ns_lshl_b32 s70, s70, 11\ns_add_u32 s70, s70, 0xF000000")
    if PROF == 1: a("s_lshl_b32 s70, s44, 11\ns_add_u32 s70, s70, 0xF000000")
    a(f"""s_cmp_lt_u32 s44, 64
    s_cbranch_scc1 J_ENG
    s_sub_u32 s44, s44, 64
    s_cmp_lt_u32 s44, 96
    s_cbranch_scc1 J_QKV
    s_sub_u32 s44, s44, 96
    s_cmp_lt_u32 s44, {16*NAW}
    s_cbranch_scc1 J_AW
    s_sub_u32 s44, s44, {16*NAW}
    s_cmp_lt_u32 s44, {NFS*NFF}
    s_cbranch_scc1 J_FF
    s_sub_u32 s44, s44, {NFS*NFF}
    s_mov_b32 {S(sC0)}, s44
    s_mov_b32 {S(sC1)}, s44
    s_cmp_lt_u32 s44, {NR1}
    s_cbranch_scc1 J_R1
    s_sub_u32 {S(sC0)}, s44, {NR1}
    s_mov_b32 {S(sC1)}, {S(sC0)}
    s_branch J_R2
MAIN_END:
    s_endpgm""")
def build(enable=("QKV", "ENG", "AW", "FF", "R1", "R2")):
    a = Asm()
    a.raw(open("header.txt").read().rstrip())
    a.raw("; @launch kernel=init_kernel grid=(256,1,1) block=(256,1,1) lds=512")
    a.raw("; @launch kernel=main_kernel grid=(256,1,1) block=(256,1,1) lds=163840")
    a.raw('.amdgcn_target "amdgcn-amd-amdhsa--gfx950"\n.text\n.globl init_kernel\n.p2align 8\n.type init_kernel,@function\ninit_kernel:')
    gen_init(a)
    a.raw('.globl main_kernel\n.p2align 8\n.type main_kernel,@function\nmain_kernel:')
    dispatcher(a)
    def sect(tag, fn):
        a(f"J_{tag}:")
        if tag in enable: fn(f"E_{tag}")
        a(f"E_{tag}:\ns_endpgm")
    def qkv(end):
        a(f"""s_cmp_ge_u32 s44, 48
        s_cselect_b32 {S(sC0)}, 1, 0
        s_cselect_b32 {S(sT0)}, 48, 0
        s_mov_b32 {S(sC1)}, {S(sC0)}
        s_sub_u32 s44, s44, {S(sT0)}
        s_lshr_b32 s40, s44, 4
        s_and_b32 s41, s44, 15
        s_cmp_eq_u32 s40, 2
        s_cbranch_scc1 J_V
        s_cmp_eq_u32 s40, 1
        s_cbranch_scc1 J_K""")
        srd(a, SA, K_WQ, 4194304); a("s_branch J_QK\nJ_K:"); srd(a, SA, K_WK, 4194304); a("J_QK:")
        QKVRole(False).gen(a, end)
        a("J_V:"); srd(a, SA, K_WV, 4194304)
        QKVRole(True).gen(a, end)
    sect("R1", lambda e: RedRole(1, NR1).gen(a, e))
    sect("R2", lambda e: RedRole(2, NR2).gen(a, e))
    sect("QKV", qkv)
    sect("FF", lambda e: FFRole(NFF).gen(a, e))
    sect("AW", lambda e: AWRole(NAW).gen(a, e))
    sect("ENG", lambda e: gen_engine(a, e))
    a.raw('.section .rodata,"a"')
    for k, nv, acc in (("init_kernel", 64, 64), ("main_kernel", 512, 256)):
        a.raw(f""".p2align 6
.amdhsa_kernel {k}
  .amdhsa_next_free_vgpr {nv}
  .amdhsa_next_free_sgpr 102
  .amdhsa_accum_offset {acc}
  .amdhsa_group_segment_fixed_size 0
  .amdhsa_kernarg_size 104
  .amdhsa_user_sgpr_count 2
  .amdhsa_user_sgpr_kernarg_segment_ptr 1
  .amdhsa_system_sgpr_workgroup_id_x 1
.end_amdhsa_kernel""")
    return a.text()
if __name__ == "__main__":
    en = tuple(sys.argv[2].split(",")) if len(sys.argv) > 2 else ("QKV", "ENG", "AW", "FF", "R1", "R2")
    out = sys.argv[1] if len(sys.argv) > 1 else f"cdna_kernels/{NAME}.s"
    open(out, "w").write(build(en))
```

```python
from emit import *
CNT_H = 0x0
CNT_S = 0x20000
ZERO_END = 0x28000
ENG = 0x40000; ENG_STRIDE = 0x50000; MEMB = 0x40000
XR = 0x0200000; XN = 0x0600000; X1 = 0x0A00000; XN1 = 0x0E00000
KVM = 0x1200000; QKV = 0x2200000; P1 = 0x8200000; P2 = 0xC200000
WS_BYTES = 0x10000000
NFS = 11
K_X, K_MEM0, K_WQ, K_WK, K_WV, K_WO, K_W1, K_W2, K_OUT, K_DBG, K_WS = 0, 8, 16, 24, 32, 40, 64, 72, 80, 88, 96
SWS = 4; SA = 8; SB = 12; sW = 16; sIDX = 17; sC0 = 18; sC1 = 19; sCUR = 20; sNXT = 21; sPEND = 22
sT0 = 24; sT1 = 25; sT2 = 26; sT3 = 27; sSTART = 28
sTOG = 30; sLO = 31; sHI = 32; sOFF = 33; sOFF2 = 34; sOFF3 = 35; sTM = 36
sEX = 38
TIMEOUT = 3000000
def srd(a, d, karg, nbytes):
    a(f"s_load_dwordx2 {S(d,2)}, s[0:1], {karg}")
    a(f"s_mov_b32 {S(d+2)}, {nbytes}\ns_mov_b32 {S(d+3)}, 0x00020000\ns_waitcnt lgkmcnt(0)")
def timeout_check(a, endlabel):
    a(f"s_memrealtime {S(sTM,2)}\ns_waitcnt lgkmcnt(0)\ns_sub_u32 {S(sTM)}, {S(sTM)}, {S(sSTART)}")
    a(f"s_cmp_gt_u32 {S(sTM)}, {TIMEOUT}\ns_cbranch_scc1 {endlabel}")
def load_w(a, units, srdreg, voff, ntiles, stage0, nslots, soff=None):
    nd = ntiles // 2
    suf = {1: "dword", 2: "dwordx2", 4: "dwordx4"}[nd]
    def issue(u):
        base = stage0 + (u % nslots) * 8 * nd
        for jj, ro in enumerate(units[u][0]):
            if soff is None: a(f"s_mov_b32 {S(sT0)}, {ro}")
            else: a(f"s_add_u32 {S(sT0)}, {S(soff)}, {ro}")
            a(f"buffer_load_{suf} {V(base+jj*nd, nd)}, {V(voff)}, {S(srdreg,4)}, {S(sT0)} offen")
    n = len(units)
    for u in range(min(nslots, n)): issue(u)
    for u in range(n):
        inflight = min(n, u + nslots) - u - 1
        a(f"s_waitcnt vmcnt({8*inflight})")
        base = stage0 + (u % nslots) * 8 * nd
        units[u][1](base, nd)
        if u + nslots < n: issue(u + nslots)
def perm_to(a, base, nd, j, r, dst, tmp):
    lo = base + (2 * r) * nd + j // 2; hi = base + (2 * r + 1) * nd + j // 2
    sel = sHI if j % 2 else sLO
    if dst[0] == "v": a(f"v_perm_b32 {V(dst[1])}, {V(hi)}, {V(lo)}, {S(sel)}")
    else: a(f"v_perm_b32 {V(tmp)}, {V(hi)}, {V(lo)}, {S(sel)}\nv_accvgpr_write_b32 {A(dst[1])}, {V(tmp)}")
def xsum(a, v, t, bits):
    for b in bits:
        if b == 3: a(f"v_add_f32_dpp {V(v)}, {V(v)}, {V(v)} row_ror:8 row_mask:0xf bank_mask:0xf")
        else:
            a(f"v_mov_b32 {V(t)}, {V(v)}\nv_permlane{16 if b == 4 else 32}_swap_b32 {V(v)}, {V(t)}\nv_add_f32 {V(v)}, {V(v)}, {V(t)}")
def xmax(a, v, t, bits):
    for b in bits:
        a(f"v_mov_b32 {V(t)}, {V(v)}\nv_permlane{16 if b == 4 else 32}_swap_b32 {V(v)}, {V(t)}\nv_max_f32 {V(v)}, {V(v)}, {V(t)}")
import os
PROF = int(os.environ.get("PROF", "0"))
def stamp(a, n):
    if PROF == 1: a(f"s_memrealtime s[{72+2*n}:{73+2*n}]\ns_waitcnt lgkmcnt(0)")
def prof_store(a, code, tv=248):
    if PROF != 1: return
    sk = a.label("Lpf")
    a(f"s_cmp_lg_u32 {S(sW)}, 0\ns_cbranch_scc1 {sk}\nv_mov_b32 {V(tv)}, {S(code)}\nv_mov_b32 {V(tv+1)}, s72\nv_mov_b32 {V(tv+2)}, s74\nv_mov_b32 {V(tv+3)}, s76")
    a(f"s_mov_b64 exec, 1\nbuffer_store_dwordx4 {V(tv,4)}, v2, {S(SWS,4)}, s70 offen\ns_mov_b64 exec, -1\n{sk}:\ns_add_u32 s70, s70, 16")
def es(a, n):
    if PROF == 2: a(f"s_memtime s[{72+2*n}:{73+2*n}]\ns_waitcnt lgkmcnt(0)")
def es_store(a, tv):
    if PROF != 2: return
    for i in range(8): a(f"v_mov_b32 {V(tv+i)}, s{72+2*i}")
    a(f"s_mov_b64 exec, 1\nbuffer_store_dwordx4 {V(tv,4)}, v2, {S(SWS,4)}, s70 offen\nbuffer_store_dwordx4 {V(tv+4,4)}, v2, {S(SWS,4)}, s70 offen offset:16\ns_mov_b64 exec, -1\ns_add_u32 s70, s70, 32")
LDS_CODE = 163776
class Role:
    NI = 64; R = 1; prefer = 0; NL = 0; NS = 0
    def flag_off(s, a, dst, l, cur): raise NotImplementedError
    def gen(s, a, end):
        nm = s.name
        NI = s.NI
        s.prologue(a)
        a(f"s_mov_b32 {S(sPEND)}, -1\ns_mov_b32 {S(sTOG)}, 0")
        def flagloads():
            for l, c in ((0, sC0), (1, sC1)):
                a(f"s_min_u32 {S(sT1)}, {S(c)}, {NI-1}")
                s.flag_off(a, sT0, l, sT1)
                a(f"buffer_load_dword {V(3+l)}, v2, {S(SWS,4)}, {S(sT0)} offen sc1")
        def decide():
            a(f"v_readfirstlane_b32 {S(sT1)}, v3\nv_readfirstlane_b32 {S(sT2)}, v4\ns_mov_b32 {S(sT0)}, -1")
            for l in ((1, 0) if s.prefer == 0 else (0, 1)):
                c = (sC0, sC1)[l]; sk = a.label("Lsk")
                a(f"s_cmp_ge_u32 {S(c)}, {NI}\ns_cbranch_scc1 {sk}\ns_cmp_lg_u32 {S(sT1+l)}, {s.expect}\ns_cbranch_scc1 {sk}")
                a(f"s_add_u32 {S(sT0)}, {S(c)}, {l*NI}\n{sk}:")
        def putcode():
            a(f"v_mov_b32 v5, {S(sT0)}\nv_mov_b32 v6, {S(sTOG)}\nds_write_b32 v6, v5 offset:{LDS_CODE % 65536 if False else 0}" if False else "")
            a(f"s_lshl_b32 {S(sT1)}, {S(sTOG)}, 2\ns_add_u32 {S(sT1)}, {S(sT1)}, {LDS_CODE}\nv_mov_b32 v5, {S(sT0)}\nv_mov_b32 v6, {S(sT1)}\nds_write_b32 v6, v5")
        def getcode(dst):
            a(f"s_lshl_b32 {S(sT1)}, {S(sTOG)}, 2\ns_add_u32 {S(sT1)}, {S(sT1)}, {LDS_CODE}\nv_mov_b32 v6, {S(sT1)}\nds_read_b32 v5, v6\ns_waitcnt lgkmcnt(0)\nv_readfirstlane_b32 {S(dst)}, v5")
        def advance(code):
            l1 = a.label("Lad"); l2 = a.label("Lad")
            a(f"s_cmp_ge_u32 {S(code)}, {NI}\ns_cbranch_scc1 {l1}\ns_add_u32 {S(sC0)}, {S(sC0)}, {s.R}\ns_branch {l2}\n{l1}:\ns_add_u32 {S(sC1)}, {S(sC1)}, {s.R}\n{l2}:")
        def signal():
            sk = a.label("Lsg")
            a(f"s_cmp_lg_u32 {S(sW)}, 0\ns_cbranch_scc1 {sk}")
            s.signal(a, sk)
            a(f"s_mov_b64 {S(sEX,2)}, exec\ns_mov_b64 exec, 1\nbuffer_atomic_add v5, v2, {S(SWS,4)}, {S(sT0)} offen\ns_mov_b64 exec, {S(sEX,2)}\n{sk}:")
            a(f"s_mov_b32 {S(sPEND)}, -1")
        a(f"{nm}_BLOCK:")
        a(f"s_cmp_eq_u32 {S(sPEND)}, -1\ns_cbranch_scc1 {nm}_B1\ns_waitcnt vmcnt(0)\ns_barrier")
        signal()
        a(f"{nm}_B1:\ns_min_u32 {S(sT0)}, {S(sC0)}, {S(sC1)}\ns_cmp_ge_u32 {S(sT0)}, {NI}\ns_cbranch_scc1 {end}")
        a(f"s_xor_b32 {S(sTOG)}, {S(sTOG)}, 1")
        a(f"s_cmp_lg_u32 {S(sW)}, 0\ns_cbranch_scc1 {nm}_B3\n{nm}_B2:")
        flagloads()
        a("s_waitcnt vmcnt(0)")
        decide()
        a(f"s_cmp_lg_u32 {S(sT0)}, -1\ns_cbranch_scc1 {nm}_B2x\ns_sleep 2")
        timeout_check(a, f"{nm}_B2x")
        a(f"s_branch {nm}_B2\n{nm}_B2x:")
        putcode()
        a(f"s_waitcnt lgkmcnt(0)\n{nm}_B3:\ns_barrier")
        getcode(sCUR)
        a(f"s_cmp_eq_u32 {S(sCUR)}, -1\ns_cbranch_scc1 {end}")
        advance(sCUR)
        s.loads(a, sCUR)
        flagloads()
        a(f"s_waitcnt vmcnt(0)\n{nm}_TOP:\ns_xor_b32 {S(sTOG)}, {S(sTOG)}, 1")
        stamp(a, 0)
        a(f"s_cmp_lg_u32 {S(sW)}, 0\ns_cbranch_scc1 {nm}_T1")
        decide(); putcode()
        a(f"{nm}_T1:")
        s.stage(a)
        a("s_waitcnt lgkmcnt(0)\ns_barrier")
        stamp(a, 1)
        getcode(sNXT)
        a(f"s_cmp_eq_u32 {S(sNXT)}, -1\ns_cbranch_scc1 {nm}_T2")
        advance(sNXT)
        s.loads(a, sNXT)
        a(f"{nm}_T2:")
        s.compute1(a)
        a(f"s_cmp_eq_u32 {S(sNXT)}, -1\ns_cbranch_scc1 {nm}_T3\ns_waitcnt vmcnt({s.NL})\ns_branch {nm}_T4\n{nm}_T3:\ns_waitcnt vmcnt(0)\n{nm}_T4:")
        a(f"s_waitcnt lgkmcnt(0)\ns_barrier\ns_cmp_eq_u32 {S(sPEND)}, -1\ns_cbranch_scc1 {nm}_T5")
        signal()
        a(f"{nm}_T5:")
        s.compute2(a)
        stamp(a, 2); prof_store(a, sCUR)
        flagloads()
        s.stores(a)
        a(f"s_mov_b32 {S(sPEND)}, {S(sCUR)}\ns_cmp_eq_u32 {S(sNXT)}, -1\ns_cbranch_scc1 {nm}_BLOCK")
        a(f"s_mov_b32 {S(sCUR)}, {S(sNXT)}\ns_waitcnt vmcnt({s.NS})\ns_nop 7\ns_branch {nm}_TOP")
```

```python
import re
TRANS = ("v_exp_f32", "v_log_f32", "v_rcp_f32", "v_rsq_f32", "v_sqrt_f32")
def regs(tok):
    tok = tok.strip()
    tok = re.sub(r"^-|^abs\(|\)$|^\|", "", tok).rstrip("|")
    m = re.fullmatch(r"([vas])(\d+)", tok)
    if m: return [(m.group(1), int(m.group(2)))]
    m = re.fullmatch(r"([vas])\[(\d+):(\d+)\]", tok)
    if m: return [(m.group(1), i) for i in range(int(m.group(2)), int(m.group(3)) + 1)]
    if tok == "vcc": return [("s", "vcc")]
    return []
class Asm:
    def __init__(s):
        s.out = []; s.t = 0
        s.valu_w = {}; s.trans_w = {}; s.mfma_w = {}; s.mfma_c = {}; s.vs_w = {}; s.st_d = {}
        s.uid = 0
    def label(s, p="L"):
        s.uid += 1; return f"{p}_{s.uid}"
    def raw(s, line): s.out.append(line)
    def __call__(s, text):
        for line in text.split("\n"):
            line = line.split(";")[0].strip()
            if line: s.ins(line)
    def ins(s, line):
        if line.endswith(":") or line.startswith("."):
            s.out.append(line); return
        op, _, rest = line.partition(" ")
        mods = " ".join(re.findall(r"\s\w+:\[[\d,]*\]", rest))
        rest2 = re.sub(r"\s\w+:\[[\d,]*\]", "", rest)
        toks = [x.strip() for x in rest2.split(",")] if rest2 else []
        last_extra = mods
        if toks:
            parts = toks[-1].split()
            toks[-1] = parts[0]; last_extra += " " + " ".join(parts[1:])
        R = [regs(x) for x in toks]
        need = 0
        def chk(d, rs, n):
            nonlocal need
            for r in rs:
                if r in d: need = max(need, n - (s.t - d[r] - 1))
        flat = lambda L: [r for x in L for r in x]
        mf = op.startswith("v_mfma") or op.startswith("v_smfmac")
        valu = op.startswith("v_") and not mf
        vmem = op.startswith(("global_", "buffer_"))
        ds = op.startswith("ds_")
        if mf:
            D = R[0]; sm = op.startswith("v_smfmac")
            AB = R[1] + R[2] + (R[3] if sm else [])
            C = D if sm else R[3]
            chk(s.valu_w, AB + C, 2)
            for r in AB:
                if r in s.mfma_w: need = max(need, 8 - (s.t - s.mfma_w[r][0] - 1))
            for r in C + D:
                if r in s.mfma_w and s.mfma_w[r][1] != (tuple(C) if r in C else None):
                    need = max(need, 6 - (s.t - s.mfma_w[r][0] - 1))
        elif valu:
            nd = 2 if (op.startswith(("v_add_co", "v_addc_co", "v_sub_co")) or "swap" in op) else 1
            W = flat(R[:nd]); S = flat(R[nd:])
            if "swap" in op or op.startswith(("v_fmac", "v_writelane")) or "dpp" in op or "row_" in last_extra or "quad_perm" in last_extra: S = S + W
            mw = {k: v[0] for k, v in s.mfma_w.items()}
            chk(mw, W + S, 8); chk(s.mfma_c, W, 3); chk(s.trans_w, S, 1); chk(s.st_d, W, 2)
            chk(s.vs_w, [r for r in S if r[0] == "s"], 4 if op.startswith(("v_readlane", "v_writelane")) else 2)
            if "permlane" in op or "dpp" in op or "row_" in last_extra or "quad_perm" in last_extra: chk(s.valu_w, S, 2)
            if op.startswith(("v_readlane", "v_readfirstlane")): chk(s.valu_w, S, 1)
        elif vmem or ds:
            A = flat(R)
            mw = {k: v[0] for k, v in s.mfma_w.items()}
            chk(mw, A, 8); chk(s.vs_w, [r for r in A if r[0] == "s"], 5)
            if "load" in op or "read" in op: chk(s.st_d, R[0], 1); chk(s.mfma_c, R[0], 3)
        while need > 0:
            n = min(need, 16); s.out.append(f"    s_nop {n-1}"); s.t += n; need -= n
        s.out.append("    " + line)
        if mf:
            for r in D: s.mfma_w[r] = (s.t, tuple(D)); s.valu_w.pop(r, None)
            for r in C: s.mfma_c[r] = s.t
        elif valu:
            for r in W:
                if r[0] == "s": s.vs_w[r] = s.t
                else:
                    s.valu_w[r] = s.t; s.mfma_w.pop(r, None)
                    if op.startswith(TRANS): s.trans_w[r] = s.t
                    else: s.trans_w.pop(r, None)
        elif vmem and "store" in op and ("x4" in op or "x3" in op):
            for r in (R[1] if op.startswith("global") else R[0]): s.st_d[r] = s.t
        s.t += (int(rest) + 1) if op == "s_nop" else 1
    def text(s): return "\n".join(s.out) + "\n"
def V(i, n=1): return f"v{i}" if n == 1 else f"v[{i}:{i+n-1}]"
def A(i, n=1): return f"a{i}" if n == 1 else f"a[{i}:{i+n-1}]"
def S(i, n=1): return f"s{i}" if n == 1 else f"s[{i}:{i+n-1}]"
```

```python
from roles2 import *
SM = "v_smfmac_f32_16x16x64_bf16"
L_KV = 131072; L_MEM = 147456; L_QK = L_MEM; L_VM = 156672; L_SEL = 158720
JS = 544; US = 4*JS
sL, sH, sS, sFAST, sTAG, sPB, sMW, sMR, sMZ = 40, 41, 42, 43, 46, 47, 48, 49, 50
sMLO, sMHI, sMG2, sM8 = 52, 54, 56, 58
sKV, sKVM, sFLG, sSIG, sM0K, sM0V, sKOK, sPB2 = 60, 61, 62, 63, 64, 65, 66, 67
DELAY1, DELAY2 = 0, 0
def gen_engine(a, end):
    a(f"s_lshr_b32 {S(sL)}, s44, 5\ns_and_b32 {S(sH)}, s44, 31\ns_mov_b32 s45, {fbits(SC)}\ns_mov_b32 s44, s45")
    a(f"""v_lshrrev_b32 v5, 4, v1
    v_and_b32 v6, 15, v1
    v_lshrrev_b32 v7, 1, v5
    v_and_b32 v9, 1, v5
    v_lshlrev_b32 v10, 4, v7
    v_lshl_add_u32 v11, v9, 2, v10          ; 16*(g/2)+4*(g%2)
    v_lshl_add_u32 v12, v9, 1, v10          ; 16*(g/2)+2*(g%2)
    v_lshlrev_b32 v11, 13, v11
    v_lshlrev_b32 v12, 10, v12
    s_lshl_b32 {S(sT1)}, {S(sH)}, 8
    s_and_b32 {S(sT2)}, {S(sW)}, 1
    s_lshl_b32 {S(sT3)}, {S(sT2)}, 7
    s_add_u32 {S(sT3)}, {S(sT3)}, {S(sT1)}
    v_lshlrev_b32 v13, 3, v6
    v_add3_u32 v8, v11, v13, {S(sT3)}
    s_lshr_b32 {S(sT3)}, {S(sW)}, 1
    s_lshl_b32 {S(sT3)}, {S(sT3)}, 7
    s_lshl_b32 {S(sT2)}, {S(sT2)}, 2
    s_add_u32 {S(sT3)}, {S(sT3)}, {S(sT2)}
    s_add_u32 {S(sT3)}, {S(sT3)}, {S(sT1)}
    v_add3_u32 v14, v11, v13, {S(sT3)}       ; v voffset
    s_lshl_b32 {S(sT3)}, {S(sW)}, 8
    v_lshlrev_b32 v13, 4, v6
    v_add3_u32 v15, v12, v13, {S(sT3)}
    s_lshl_b32 {S(sT3)}, {S(sW)}, 15
    v_lshlrev_b32 v6, 4, v1
    v_add_u32 v6, {S(sT3)}, v6
    s_cmp_ge_u32 {S(sW)}, 2
    s_cbranch_scc1 EN_K""")
    srd(a, SA, K_WQ, 4194304); a("s_branch EN_QK\nEN_K:"); srd(a, SA, K_WK, 4194304); a("EN_QK:")
    drow = lambda b, hh: [(64*b + 32*hh + 8*((j%4)//2) + 2*(j//4) + j%2) * 8192 for j in range(8)]
    units = []
    for b in range(8):
        for hh in range(2):
            def sink(base, nd, b=b, hh=hh):
                for j in range(2):
                    for r in range(4): perm_to(a, base, nd, j, r, ("v", 120 + 4*j + r), 0)
                    a(f"ds_write_b128 v6, {V(120+4*j,4)} offset:{(b*2+j)*2048 + hh*1024}")
                for j in range(2, 4):
                    for r in range(4): perm_to(a, base, nd, j, r, ("a", b*16 + (j-2)*8 + hh*4 + r), 4 + (r & 1))
            units.append((drow(b, hh), sink))
    load_w(a, units, SA, 8, 4, 16, 6)
    srd(a, SA, K_WV, 4194304)
    units = []
    for b in range(8):
        for hh in range(2):
            def sink(base, nd, b=b, hh=hh):
                for j in range(2):
                    for r in range(4): perm_to(a, base, nd, j, r, ("a", 128 + b*16 + j*8 + hh*4 + r), 4 + (r & 1))
            units.append((drow(b, hh), sink))
    load_w(a, units, SA, 14, 2, 16, 7)
    srd(a, SA, K_WO, 4194304)
    units = []
    for b in range(2):
        for hh in range(2):
            def sink(base, nd, b=b, hh=hh):
                for j in range(8):
                    for r in range(4): perm_to(a, base, nd, j, r, ("v", 128 + (b*8+j)*8 + hh*4 + r), 0)
            units.append(([(64*b + 32*hh + 8*(j//4) + 4*(j%2) + (j%4)//2) * 1024 for j in range(8)], sink))
    a(f"s_lshl_b32 {S(sOFF2)}, {S(sH)}, 17")
    load_w(a, units, SA, 15, 8, 16, 3, sOFF2)
    srd(a, SA, K_MEM0, 8192)
    a(f"""v_lshrrev_b32 v5, 4, v0
    v_lshlrev_b32 v5, 5, v5
    v_bfe_u32 v7, v0, 1, 1
    v_lshl_add_u32 v5, v7, 4, v5
    v_bfe_u32 v7, v0, 2, 2
    v_lshl_add_u32 v5, v7, 11, v5
    v_and_b32 v7, 1, v0
    v_lshl_add_u32 v5, v7, 10, v5
    buffer_load_dwordx4 v[16:19], v5, {S(SA,4)}, 0 offen
    buffer_load_dwordx4 v[20:23], v5, {S(SA,4)}, 0 offen offset:512
    v_lshlrev_b32 v5, 4, v0
    v_add_u32 v5, {L_MEM}, v5
    s_waitcnt vmcnt(0)
    ds_write_b128 v5, v[16:19]
    ds_write_b128 v5, v[20:23] offset:4096
    v_lshrrev_b32 v16, 4, v1                 ; g
    v_and_b32 v17, 15, v1                    ; c
    v_and_b32 v18, 2, v1
    v_cmp_eq_u32 {S(sMLO,2)}, 0, v18
    v_cmp_ne_u32 {S(sMHI,2)}, 0, v18
    v_mov_b32 v4, 0xeeee
    v_mov_b32 v5, 0x4444
    v_cndmask_b32 v4, v4, v5, {S(sMLO,2)}
    s_mov_b32 {S(sM8)}, 0x00ff00ff
    s_mov_b32 {S(sM8+1)}, 0
    v_lshlrev_b32 v7, 4, v1
    v_mov_b32 v13, v7
    v_add_u32 v7, {L_KV}, v7
    v_and_b32 v21, 1, v1
    v_lshlrev_b32 v21, 4, v21
    v_mov_b32 v22, 0x3f80
    v_lshlrev_b32 v21, v21, v22
    v_lshrrev_b32 v20, 1, v17""")
    for r in range(4): a(f"v_cmp_eq_u32 vcc, {r}, v20\nv_cndmask_b32 {V(24+r)}, 0, v21, vcc")
    a(f"""ds_write_b128 v7, v[24:27] offset:{L_SEL-L_KV}
    s_mul_i32 {S(sT0)}, {S(sW)}, {US}
    s_add_u32 {S(sT0)}, {S(sT0)}, {L_QK}
    v_lshlrev_b32 v8, 5, v17
    v_lshl_add_u32 v8, v16, 3, v8
    v_add_u32 v8, {S(sT0)}, v8
    ; tr read addr = L_QK + (c/4)*JS + g*128 + (c%4)*8
    v_lshrrev_b32 v9, 2, v17
    v_mul_u32_u24 v9, {JS}, v9
    v_lshl_add_u32 v9, v16, 7, v9
    v_and_b32 v5, 3, v17
    v_lshl_add_u32 v9, v5, 3, v9
    v_add_u32 v9, {L_QK}, v9
    s_lshl_b32 {S(sT0)}, {S(sW)}, 9
    v_lshlrev_b32 v11, 3, v1
    v_add_u32 v11, {L_VM}, v11
    v_add_u32 v10, {S(sT0)}, v11
    ; partial store voffset = (8w + c/2)*8192 + h*256 + ((c%2)*4+g)*16
    v_lshrrev_b32 v12, 1, v17
    v_lshlrev_b32 v12, 13, v12
    v_and_b32 v5, 1, v17
    v_lshl_add_u32 v12, v5, 6, v12
    v_lshl_add_u32 v12, v16, 4, v12
    s_lshl_b32 {S(sT0)}, {S(sW)}, 16
    s_lshl_b32 {S(sT1)}, {S(sH)}, 8
    s_add_u32 {S(sT0)}, {S(sT0)}, {S(sT1)}
    v_add_u32 v12, {S(sT0)}, v12
    s_mul_i32 {S(sPB)}, {S(sL)}, {ENG_STRIDE}
    s_add_u32 {S(sPB)}, {S(sPB)}, {ENG}
    s_add_u32 {S(sPB2)}, {S(sPB)}, 4096
    s_add_u32 {S(sMZ)}, {S(sPB)}, {MEMB}
    s_add_u32 {S(sMW)}, {S(sMZ)}, 8192
    s_add_u32 {S(sMR)}, {S(sMW)}, 8192
    s_mul_i32 {S(sKV)}, {S(sL)}, {64*786432}
    s_lshl_b32 {S(sT0)}, {S(sH)}, 13
    s_add_u32 {S(sKV)}, {S(sKV)}, {S(sT0)}
    s_and_b32 {S(sT0)}, {S(sW)}, 1
    s_lshl_b32 {S(sT0)}, {S(sT0)}, 12
    s_add_u32 {S(sM0K)}, {S(sT0)}, {L_KV}
    s_add_u32 {S(sM0V)}, {S(sM0K)}, 8192
    s_add_u32 {S(sKV)}, {S(sKV)}, {S(sT0)}
    s_add_u32 {S(sKV)}, {S(sKV)}, {QKV + 262144}
    s_lshl_b32 {S(sKVM)}, {S(sL)}, 23
    s_lshl_b32 {S(sT0)}, {S(sH)}, 12
    s_add_u32 {S(sKVM)}, {S(sKVM)}, {S(sT0)}
    s_add_u32 {S(sKVM)}, {S(sKVM)}, {KVM}
    s_lshl_b32 {S(sFLG)}, {S(sL)}, 16
    s_lshr_b32 {S(sT0)}, {S(sH)}, 1
    s_lshl_b32 {S(sT0)}, {S(sT0)}, 6
    s_add_u32 {S(sFLG)}, {S(sFLG)}, {S(sT0)}
    s_mov_b32 {S(sSIG)}, -1
    s_mov_b32 {S(sS)}, 0
    s_mov_b32 {S(sTAG)}, 1
    s_cmp_ge_u32 {S(sW)}, 2
    s_cbranch_scc1 EN_S23
    v_lshrrev_b32 v13, 3, v1
    v_lshlrev_b32 v13, 8, v13
    v_and_b32 v5, 7, v1
    v_lshl_add_u32 v13, v5, 4, v13
    s_lshl_b32 {S(sT0)}, {S(sH)}, 13
    s_lshl_b32 {S(sT1)}, {S(sW)}, 7
    s_add_u32 {S(sT0)}, {S(sT0)}, {S(sT1)}
    v_add_u32 v13, {S(sT0)}, v13
    v_and_b32 v14, 3, v1
    v_lshlrev_b32 v14, 6, v14
    v_bfe_u32 v5, v1, 2, 1
    v_lshl_add_u32 v14, v5, 5, v14
    v_lshl_add_u32 v14, v16, 3, v14
    s_lshl_b32 {S(sT0)}, {S(sH)}, 8
    s_lshl_b32 {S(sT1)}, {S(sW)}, 4
    s_add_u32 {S(sT0)}, {S(sT0)}, {S(sT1)}
    v_add_u32 v14, {S(sT0)}, v14
    s_lshl_b32 {S(sT0)}, {S(sW)}, 12
    v_lshlrev_b32 v15, 4, v1
    v_add_u32 v15, {S(sT0)}, v15
    v_add_u32 v0, {L_MEM}, v15
    s_branch EN_S4
EN_S23:
    v_lshrrev_b32 v14, 2, v17
    v_lshlrev_b32 v14, 5, v14
    v_and_b32 v5, 1, v1
    v_lshl_add_u32 v14, v5, 4, v14
    v_lshl_add_u32 v14, v16, 7, v14
    v_add_u32 v15, {L_VM}, v13
EN_S4:
    v_lshlrev_b32 v5, 2, v1
EN_F1:
    buffer_load_dword v3, v5, {S(SB,4)}, 0 offen sc1
    s_waitcnt vmcnt(0)
    v_readlane_b32 {S(sT0)}, v3, {S(sL)}
    v_readlane_b32 {S(sT1)}, v3, 8
    s_mov_b32 {S(sFAST)}, 1
    s_cmp_ge_u32 {S(sT0)}, 32
    s_cbranch_scc1 EN_F2
    s_mov_b32 {S(sFAST)}, 0
    s_cmp_ge_u32 {S(sT1)}, 256
    s_cbranch_scc1 EN_F3""")
    timeout_check(a, end)
    a(f"""s_branch EN_F1
EN_F3:
    buffer_load_dword v3, v5, {S(SB,4)}, 0 offen sc1
    s_waitcnt vmcnt(0)
    v_readlane_b32 {S(sT0)}, v3, {S(sL)}
    s_cmp_ge_u32 {S(sT0)}, 32
    s_cselect_b32 {S(sFAST)}, 1, 0
EN_F2:
    v_mov_b32 v3, 0""")
    RING = 64
    def ring():
        for b in range(4):
            for q in range(4): a(f"ds_read_b128 {V(RING+b*16+q*4,4)}, v6 offset:{b*4096+q*1024}")
    def zero(r, n):
        return [f"v_mov_b64 {V(r+2*i,2)}, 0" for i in range(n // 2)]
    def flag_wait(tag):
        a(f"""EN_KV{tag}:
        v_readfirstlane_b32 {S(sT0)}, v3
        s_lshr_b32 {S(sT0)}, {S(sT0)}, 8
        s_cmp_eq_u32 {S(sT0)}, 2
        s_cbranch_scc1 EN_KVG{tag}
        buffer_load_dword v3, v2, {S(SWS,4)}, {S(sFLG)} offen sc1""")
        timeout_check(a, end)
        a(f"s_waitcnt vmcnt(0)\ns_branch EN_KV{tag}\nEN_KVG{tag}:")
    def dma(m0, so):
        a(f"s_mov_b32 m0, {S(m0)}\ns_nop 0")
        for i in range(4): a(f"buffer_load_dwordx4 v13, {S(SWS,4)}, {S(so)} offen offset:{i*1024} sc1 lds")
    def dma_v():
        a(f"s_add_u32 {S(sT1)}, {S(sKV)}, 262144"); dma(sM0V, sT1)
        a(f"s_add_u32 {S(sKV)}, {S(sKV)}, 786432")
    def trread(dst, mat, ks):
        return [f"ds_read_b64_tr_b16 {V(dst+ks*4+x*2,2)}, v9 offset:{(mat*2+ks//2)*US + (2*(ks%2)+x)*32}" for x in range(2)]
    KM = 16
    def publish(sfx):
        a(f"s_cmp_eq_u32 {S(sW)}, 3\ns_cbranch_scc1 EN_P3{sfx}\ns_mov_b64 exec, {S(sMLO,2)}")
        for ks in range(4): a(f"buffer_store_dwordx4 {V(KM+4*ks,4)}, v14, {S(SWS,4)}, {S(sKVM)} offen offset:{ks*512} sc1")
        a(f"s_mov_b64 exec, -1\ns_branch EN_P4{sfx}\nEN_P3{sfx}:\nds_read_b128 v[40:43], v15\nds_read_b128 v[44:47], v15 offset:1024\ns_waitcnt lgkmcnt(0)")
        for i in range(2): a(f"buffer_store_dwordx4 {V(40+4*i,4)}, v13, {S(SWS,4)}, {S(sKVM)} offen offset:{2048+i*1024} sc1")
        a(f"EN_P4{sfx}:\ns_add_u32 {S(sKVM)}, {S(sKVM)}, 131072")
    def sig():
        a(f"s_mov_b64 exec, 1\nv_mov_b32 v5, 1\nbuffer_atomic_add v5, v2, {S(SWS,4)}, {S(sSIG)} offen\ns_mov_b64 exec, -1")
    def store2(txt):
        l1 = a.label("EN_ss"); l2 = a.label("EN_ss")
        a(f"s_cmp_eq_u32 {S(sFAST)}, 0\ns_cbranch_scc1 {l1}")
        a(txt.replace("@", "")); a(f"s_branch {l2}\n{l1}:"); a(txt.replace("@", " sc1")); a(f"{l2}:")
    def weave(main, side, per):
        for m in main:
            a(m)
            for _ in range(per):
                if side: a(side.pop(0))
    a(f"s_waitcnt lgkmcnt(0)\ns_cmp_lt_u32 {S(sW)}, 2\ns_cbranch_scc1 EN_I1")
    flag_wait("A"); dma(sM0K, sKV); dma_v()
    a(f"s_add_u32 {S(sFLG)}, {S(sFLG)}, 1024\nbuffer_load_dword v3, v2, {S(SWS,4)}, {S(sFLG)} offen sc1\ns_waitcnt vmcnt(0)\nEN_I1:")
    ring()
    for x in zero(16, 16): a(x)
    a("EN_STEP:\ns_waitcnt lgkmcnt(0)\ns_barrier")
    stamp(a, 0); es(a, 0)
    MEMF = 32
    for b in range(8): a(f"ds_read_b128 {V(MEMF+4*b,4)}, v7 offset:{L_MEM-L_KV+b*1024}")
    nd = 8
    done_at = {("m", b): b + 1 for b in range(8)}
    AV, K0, K1, Q = 64, 80, 96, 112
    for b in range(8):
        a(f"s_waitcnt lgkmcnt({min(15, nd - done_at[('m', b)])})")
        for j in (2, 3): a(f"{SM} {V(16+4*j,4)}, {V(MEMF+4*b,4)}, {A(b*16+(j-2)*8,8)}, v4")
        if b >= 4: a(f"s_waitcnt lgkmcnt({min(15, nd - done_at[('r', b)])})")
        if b == 6: a("s_barrier")
        for j in (0, 1):
            a(f"{SM} {V(16+4*j,4)}, {V(MEMF+4*b,4)}, {V(RING+(b%4)*16+j*8,8)}, v4")
            if b < 4:
                for q in range(2): a(f"ds_read_b128 {V(RING+b*16+j*8+q*4,4)}, v6 offset:{(b+4)*4096+j*2048+q*1024}")
            if b in (5, 6):
                for q in range(2): a(f"ds_read_b128 {V(RING+(b%4)*16+j*8+q*4,4)}, v7 offset:{(b-5)*4096+(2*j+q)*1024}")
        if b < 4 or b in (5, 6): nd += 4
        if b < 4: done_at[("r", b + 4)] = nd
        if b == 4:
            for x in zero(AV, 8): a(x)
    es(a, 1)
    vm = [f"{SM} {V(AV+4*j,4)}, {V(MEMF+4*b,4)}, {A(128+b*16+j*8,8)}, v4" for b in range(8) for j in range(2)]
    for i in range(2): a(vm.pop(0))
    for j in (2, 3, 0, 1):
        x = 16 + 4*j
        a(f"v_pk_add_f32 {V(x,2)}, {V(x,2)}, {V(x+2,2)}\nv_cvt_pk_bf16_f32 {V(x+2)}, {V(x)}, {V(x+1)}\nv_cvt_pk_bf16_f32 {V(x+3)}, {V(x)}, {V(x+1)}")
        a(f"ds_write_b64 v8, {V(x+2,2)} offset:{j*JS}")
    for i in range(2): a(vm.pop(0))
    a(f"s_cmp_lt_u32 {S(sW)}, 2\ns_cbranch_scc1 EN_B1\ns_waitcnt vmcnt(0)\nEN_B1:")
    es(a, 2)
    a("s_waitcnt lgkmcnt(0)\ns_barrier")
    es(a, 3)
    for ks in range(4):
        for x in trread(Q, 0, ks): a(x)
    for ks in range(4):
        for x in trread(KM, 1, ks): a(x)
    a(f"s_cmp_lt_u32 {S(sW)}, 2\ns_cbranch_scc1 EN_B1b\ns_cmp_eq_u32 {S(sSIG)}, -1\ns_cbranch_scc1 EN_B1a")
    sig()
    a(f"EN_B1a:\ns_mov_b32 {S(sKOK)}, 0\nv_readfirstlane_b32 {S(sT0)}, v3\ns_lshr_b32 {S(sT0)}, {S(sT0)}, 8\ns_cmp_lg_u32 {S(sT0)}, 2\ns_cbranch_scc1 EN_B1b\ns_mov_b32 {S(sKOK)}, 1")
    dma(sM0K, sKV)
    a("EN_B1b:")
    for i in range(6): a(vm.pop(0))
    Sx = 72
    SMr = 32
    for ks in range(4):
        a(f"s_waitcnt lgkmcnt({14-2*ks})")
        for acc, kb in ((Sx, K0), (Sx+4, K1)):
            a(f"{MF} {V(acc,4)}, {V(kb+4*ks,4)}, {V(Q+4*ks,4)}, {'0' if ks == 0 else V(acc,4)}")
    for ks in range(4):
        a(f"s_waitcnt lgkmcnt({6-2*ks})\n{MF} {V(SMr,4)}, {V(KM+4*ks,4)}, {V(Q+4*ks,4)}, {'0' if ks == 0 else V(SMr,4)}")
    VX = lambda t: K0 + 4*t
    for t in range(8): a(f"ds_read_b128 {V(VX(t),4)}, v7 offset:{8192+t*1024}")
    t = 36
    mx = [f"v_max3_f32 {V(t)}, {V(Sx)}, {V(Sx+1)}, {V(Sx+2)}", f"v_max3_f32 {V(t+1)}, {V(Sx+3)}, {V(Sx+4)}, {V(Sx+5)}",
          f"v_max3_f32 {V(t)}, {V(t)}, {V(Sx+6)}, {V(Sx+7)}", f"v_max3_f32 {V(t+1)}, {V(t+1)}, {V(SMr)}, {V(SMr+1)}",
          f"v_max_f32 {V(t)}, {V(t)}, {V(t+1)}", f"v_max_f32 {V(t+1)}, {V(t)}, {V(t+1)}"]
    for x in mx[:3]: a(x)
    a(vm.pop(0))
    for x in mx[3:]: a(x)
    a(vm.pop(0)); a(vm.pop(0))
    a(f"v_permlane16_swap_b32 {V(t)}, {V(t+1)}\nv_max_f32 {V(t)}, {V(t)}, {V(t+1)}\nv_max_f32 {V(t+1)}, {V(t)}, {V(t+1)}")
    a(vm.pop(0)); a(vm.pop(0))
    a(f"v_permlane32_swap_b32 {V(t)}, {V(t+1)}\nv_max_f32 {V(t)}, {V(t)}, {V(t+1)}")
    a(vm.pop(0)); assert not vm
    SR = [Sx + i for i in range(8)] + [SMr, SMr + 1]
    PL, PH, PM, O, VM = 112, 116, 120, 40, 56
    a(f"v_mul_f32 {V(t)}, s45, {V(t)}")
    for i in range(0, 10, 2): a(f"v_pk_fma_f32 {V(SR[i],2)}, {V(SR[i],2)}, s[44:45], {V(t,2)} op_sel:[0,1,0] op_sel_hi:[1,1,0] neg_lo:[0,0,1] neg_hi:[0,0,1]")
    for x in zero(PL, 10): a(x)
    for j in range(2): a(f"v_pk_add_f32 {V(AV+4*j,2)}, {V(AV+4*j,2)}, {V(AV+4*j+2,2)}")
    a(f"v_cvt_pk_bf16_f32 {V(AV+2)}, {V(AV)}, {V(AV+1)}\nv_cvt_pk_bf16_f32 {V(AV+3)}, {V(AV+4)}, {V(AV+5)}\nds_write_b64 v10, {V(AV+2,2)}")
    for i in range(10): a(f"v_exp_f32 {V(SR[i])}, {V(SR[i])}")
    a("s_waitcnt lgkmcnt(0)\ns_barrier")
    es(a, 4)
    a(f"s_cmp_eq_u32 {S(sS)}, 63\ns_cbranch_scc1 EN_LAST")
    for p in range(2): a(f"ds_read2_b64 {V(VM+4*p,4)}, v11 offset0:{128*p} offset1:{128*p+64}")
    a(f"s_mov_b64 exec, {S(sMLO,2)}")
    for i in range(4): pk(a, PL+i, Sx+2*i, Sx+2*i+1)
    pk(a, PM, SMr, SMr+1)
    a(f"s_mov_b64 exec, {S(sMHI,2)}")
    for i in range(4): pk(a, PH+i, Sx+2*i, Sx+2*i+1)
    pk(a, PM+1, SMr, SMr+1)
    a("s_mov_b64 exec, -1")
    side = [f"v_pk_add_f32 {V(Sx,2)}, {V(Sx,2)}, {V(Sx+2,2)}", f"v_pk_add_f32 {V(Sx+4,2)}, {V(Sx+4,2)}, {V(Sx+6,2)}",
            f"v_pk_add_f32 {V(Sx,2)}, {V(Sx,2)}, {V(SMr,2)}", f"v_pk_add_f32 {V(Sx,2)}, {V(Sx,2)}, {V(Sx+4,2)}",
            f"v_add_f32 {V(t)}, {V(Sx)}, {V(Sx+1)}", f"v_add_f32 {V(t+1)}, {V(Sx)}, {V(Sx+1)}", "s_nop 0",
            f"v_permlane16_swap_b32 {V(t)}, {V(t+1)}", f"v_add_f32 {V(t+2)}, {V(t)}, {V(t+1)}", f"v_add_f32 {V(t+1)}, {V(t)}, {V(t+1)}", "s_nop 0",
            f"v_permlane32_swap_b32 {V(t+2)}, {V(t+1)}", f"v_add_f32 {V(t)}, {V(t+2)}, {V(t+1)}", f"v_rcp_f32 {V(t)}, {V(t)}"]
    WA = lambda j: 64 + 4*j
    side += zero(64, 16)
    pv = [f"{MF} {V(O+4*p,4)}, {V(VX(2*p),4)}, {V(PL,4)}, 0" for p in range(4)]
    pv += [f"{MF} {V(O+4*p,4)}, {V(VX(2*p+1),4)}, {V(PH,4)}, {V(O+4*p,4)}" for p in range(4)]
    weave(pv, side, 2)
    a("s_waitcnt lgkmcnt(0)")
    side += zero(80, 16)
    weave([f"v_mfma_f32_16x16x16_bf16 {V(O+4*p,4)}, {V(VM+2*p,2)}, {V(PM,2)}, {V(O+4*p,4)}" for p in range(4)], side, 2)
    for x in side: a(x)
    OF = 96
    for b in range(2):
        for i in range(4): a(f"v_pk_mul_f32 {V(O+8*b+2*i,2)}, {V(O+8*b+2*i,2)}, {V(t,2)} op_sel_hi:[1,0]")
        for i in range(4): pk(a, OF+4*b+i, O+8*b+2*i, O+8*b+2*i+1)
    G = 32
    def wpost(j):
        r = [f"v_pk_add_f32 {V(WA(j),2)}, {V(WA(j),2)}, {V(WA(j)+2,2)}"]
        if j % 2: r += [f"v_cvt_pk_bf16_f32 {V(G+4*rr+j//2)}, {V(WA(j-1)+rr)}, {V(WA(j)+rr)}" for rr in range(2)]
        if j == 1: r += [f"v_and_or_b32 {V(G+4*rr)}, {V(G+4*rr)}, -2, {S(sTAG)}" for rr in range(2)]
        return r
    side = []
    for jp in range(4):
        for n, (b, j) in enumerate(((0, 2*jp), (0, 2*jp+1), (1, 2*jp), (1, 2*jp+1))):
            a(f"{SM} {V(WA(j),4)}, {V(OF+4*b,4)}, {V(128+(b*8+j)*8,8)}, v4")
            if jp >= 2 and n == 0: side += wpost(2*jp-4) + wpost(2*jp-3)
            for _ in range(1 if jp < 3 else 2):
                if side: a(side.pop(0))
    side += wpost(4) + wpost(5) + wpost(6) + wpost(7)
    for x in side: a(x)
    store2("\n".join(f"buffer_store_dwordx4 {V(G+4*rr,4)}, v12, {S(SWS,4)}, {S(sPB)} offen offset:{rr*128}@" for rr in range(2)))
    stamp(a, 1); es(a, 5)
    a(f"s_cmp_lt_u32 {S(sW)}, 2\ns_cbranch_scc1 EN_POLL")
    a(f"s_sub_u32 {S(sSIG)}, {S(sFLG)}, 1024")
    publish("")
    ring()
    a(f"s_cmp_eq_u32 {S(sKOK)}, 1\ns_cbranch_scc1 EN_KOK")
    flag_wait("B"); dma(sM0K, sKV)
    a("s_waitcnt vmcnt(0)\nEN_KOK:")
    dma_v()
    a(f"s_add_u32 {S(sFLG)}, {S(sFLG)}, 1024\nbuffer_load_dword v3, v2, {S(SWS,4)}, {S(sFLG)} offen sc1")
    for x in zero(16, 16): a(x)
    a(f"s_waitcnt vmcnt(9)\ns_branch EN_NEXT\nEN_POLL:")
    a(f"ds_read_b128 v[48:51], v7 offset:{L_SEL-L_KV}")
    ring()
    a("v_mov_b64 v[56:57], -1")
    for x in zero(16, 16): a(x)
    for _ in range(DELAY1): a("s_nop 15")
    a(f"s_mov_b32 {S(sT3)}, 0\ns_waitcnt lgkmcnt(15)\nEN_P1:")
    for i in range(4): a(f"buffer_load_dwordx4 {V(32+4*i,4)}, v13, {S(SWS,4)}, {S(sPB if i < 2 else sPB2)} offen offset:{(i%2)*2048} sc1")
    for i in range(4):
        a(f"s_waitcnt vmcnt({3-i})\n{MF} v[52:55], v[48:51], {V(32+4*i,4)}, {'0' if i == 0 else 'v[52:55]'}\nv_xor_b32 {V(58+i)}, {S(sTAG)}, {V(32+4*i)}")
    a(f"""v_or3_b32 v58, v58, v59, v60
    v_or_b32 v58, v58, v61
    v_and_b32 v58, 1, v58
    v_cmp_ne_u32 vcc, 0, v58
    s_cbranch_vccz EN_P1d
    s_add_u32 {S(sT3)}, {S(sT3)}, 1
    s_and_b32 {S(sT0)}, {S(sT3)}, 255
    s_cbranch_scc1 EN_P1""")
    timeout_check(a, end)
    a("s_branch EN_P1\nEN_P1d:\ns_nop 1")
    for i in range(4): a(f"v_add_f32_dpp {V(52+i)}, {V(52+i)}, {V(52+i)} row_ror:8 row_mask:0xf bank_mask:0xf")
    a(f"v_cvt_pk_bf16_f32 v52, v52, v53\nv_cvt_pk_bf16_f32 v53, v54, v55\ns_mov_b64 exec, {S(sM8,2)}")
    store2(f"buffer_store_dwordx2 v[52:53], v14, {S(SWS,4)}, {S(sMW)} offen@\nbuffer_store_dwordx2 v[56:57], v14, {S(SWS,4)}, {S(sMZ)} offen@")
    a("s_mov_b64 exec, -1")
    stamp(a, 2); prof_store(a, sS, 60); es(a, 6)
    for _ in range(DELAY2): a("s_nop 15")
    a(f"s_mov_b32 {S(sT3)}, 0\nEN_P2:")
    for i in range(4): a(f"buffer_load_dwordx4 {V(32+4*i,4)}, v15, {S(SWS,4)}, {S(sMW)} offen offset:{i*1024} sc1")
    for i in range(4):
        a(f"s_waitcnt vmcnt({3-i})\nds_write_b128 v0, {V(32+4*i,4)} offset:{i*1024}\nv_max_u32 {V(58+i)}, {V(32+4*i)}, {V(34+4*i)}")
    a(f"""v_max3_u32 v58, v58, v59, v60
    v_max_u32 v58, v58, v61
    v_cmp_eq_u32 vcc, -1, v58
    s_cbranch_vccz EN_NEXT
    s_add_u32 {S(sT3)}, {S(sT3)}, 1
    s_and_b32 {S(sT0)}, {S(sT3)}, 255
    s_cbranch_scc1 EN_P2""")
    timeout_check(a, end)
    a("s_branch EN_P2\nEN_NEXT:")
    es(a, 7); es_store(a, 40)
    a(f"""
    s_mov_b32 {S(sT0)}, {S(sMZ)}
    s_mov_b32 {S(sMZ)}, {S(sMW)}
    s_mov_b32 {S(sMW)}, {S(sMR)}
    s_mov_b32 {S(sMR)}, {S(sT0)}
    s_xor_b32 {S(sTAG)}, {S(sTAG)}, 1
    s_add_u32 {S(sS)}, {S(sS)}, 1
    s_branch EN_STEP
EN_LAST:
    s_cmp_lt_u32 {S(sW)}, 2
    s_cbranch_scc1 {end}
    s_sub_u32 {S(sSIG)}, {S(sFLG)}, 1024""")
    publish("L")
    a("s_waitcnt vmcnt(0)")
    sig()
```

```python
from roles import *
MF = "v_mfma_f32_16x16x32_bf16"
class RedRole(Role):
    NI = 256; prefer = 0
    def __init__(s, kind, NR):
        s.kind = kind; s.R = NR; s.name = f"RR{kind}"; s.np = 16 if kind == 1 else NFS
        s.expect = s.np; s.NL = 2 * s.np + 2; s.NS = 4 if kind == 1 else 2
    def flag_off(s, a, dst, l, cur): cnt_s(a, dst, l, cur, 1 if s.kind == 1 else 3, 2)
    def prologue(s, a):
        if s.kind == 2: srd(a, SA, K_OUT, 2097152)
        af_lane_setup(a)
        a("""v_lshrrev_b32 v5, 4, v1
        v_bfe_u32 v6, v1, 2, 2
        v_cmp_eq_u32 vcc, v5, v6
        v_and_b32 v5, 1, v1
        v_lshlrev_b32 v5, 4, v5
        v_mov_b32 v6, 0x3f80
        v_lshlrev_b32 v5, v5, v6
        v_cndmask_b32 v5, 0, v5, vcc
        v_and_b32 v6, 2, v1
        v_cmp_eq_u32 vcc, 0, v6
        v_cndmask_b32 v12, 0, v5, vcc
        v_cndmask_b32 v13, v5, 0, vcc
        v_mov_b32 v14, 0
        v_mov_b32 v15, 0
        v_mov_b32 v16, 0
        v_mov_b32 v17, 0
        v_mov_b32 v18, v12
        v_mov_b32 v19, v13""")
    def loads(s, a, code):
        af_item_off(a, sT0, code, 32768, sT1)
        a(f"s_add_u32 {S(sT0)}, {S(sT0)}, {XR if s.kind == 1 else X1}")
        for m in range(2): a(f"buffer_load_dwordx4 {V(64+4*m,4)}, v7, {S(SWS,4)}, {S(sT0)} offen offset:{m*2048} sc1")
        af_item_off(a, sT0, code, 32768 * s.np, sT1)
        a(f"s_add_u32 {S(sT0)}, {S(sT0)}, {P1 if s.kind == 1 else P2}")
        for p in range(s.np):
            for m in range(2): a(f"buffer_load_dwordx4 {V(72+8*p+4*m,4)}, v7, {S(SWS,4)}, {S(sT0)} offen offset:{m*2048} sc1")
            a(f"s_add_u32 {S(sT0)}, {S(sT0)}, 32768")
    def stage(s, a):
        for p in range(s.np + 1):
            for m in range(2):
                for h in range(2):
                    acc = V(20 + 8*m + 4*h, 4)
                    a(f"{MF} {acc}, {V(12+4*h,4)}, {V(64+8*p+4*m,4)}, {'0' if p == 0 else acc}")
        for i in range(8): pk(a, 44+i, 20+2*i, 21+2*i)
        unpack(a, 20, 44, 8)
        ln_part1(a, 20, 36, 9)
    def compute1(s, a): ln_part2(a, 20, 36, 9, 10)
    def compute2(s, a): ln_part3(a, 20, 36, 10, 52)
    def stores(s, a):
        af_item_off(a, sT0, sCUR, 32768, sT1)
        def st(src, base):
            a(f"s_add_u32 {S(sT1)}, {S(sT0)}, {base}")
            for m in range(2): a(f"buffer_store_dwordx4 {V(src+4*m,4)}, v7, {S(SWS,4)}, {S(sT1)} offen offset:{m*2048} sc1")
        if s.kind == 1: st(52, XN1); st(44, X1)
        else:
            a(f"s_cmp_ge_u32 {S(sCUR)}, 256\ns_cbranch_scc1 RR2_OUT")
            st(52, XN + 2097152); st(44, XR + 2097152)
            a(f"s_branch RR2_ST\nRR2_OUT:\ns_sub_u32 {S(sT0)}, {S(sCUR)}, 256\ns_lshl_b32 {S(sT0)}, {S(sT0)}, 13")
            for m in range(2): a(f"buffer_store_dwordx4 {V(44+4*m,4)}, v8, {S(SA,4)}, {S(sT0)} offen offset:{m*32}")
            a("RR2_ST:")
    def signal(s, a, sk):
        if s.kind == 1: cnt_s(a, sT0, 0, sPEND, 2, 2)
        else:
            a(f"s_cmp_ge_u32 {S(sPEND)}, 256\ns_cbranch_scc1 {sk}")
            cnt_s(a, sT0, 1, sPEND, 0, 2)
        a("v_mov_b32 v5, 1")

def out_gemm(a, wbase, nks, acc0, ring, rdaddr, off, k0, k1):
    rd = lambda ks: [a(f"ds_read_b128 {V(ring+(ks%3)*8+tt*4,4)}, {V(rdaddr)} offset:{off+(tt*nks+ks)*1024}") for tt in range(2)]
    for ks in range(k0, min(k0 + 2, k1)): rd(ks)
    for ks in range(k0, k1):
        a(f"s_waitcnt lgkmcnt({2*(min(ks+2,k1)-ks-1)})")
        for tt in range(2):
            for j in range(8):
                acc = V(acc0 + tt*32 + j*4, 4)
                a(f"{MF} {acc}, {A(wbase+ks*32+j*4,4)}, {V(ring+(ks%3)*8+tt*4,4)}, {'0' if ks == 0 else acc}")
            if tt == 0 and ks + 2 < k1: rd(ks + 2)
def out_stores(a, acc0, pkr, nparts):
    a(f"s_mul_i32 {S(sT0)}, {S(sCUR)}, {nparts*32768}\ns_add_u32 {S(sT0)}, {S(sT0)}, {S(sOFF)}\ns_add_u32 {S(sT1)}, {S(sT0)}, 16384")
    for tt in range(2):
        for i in range(4):
            p = pkr + ((tt*4+i) % 4) * 4
            for q in range(4): pk(a, p+q, acc0 + tt*32 + (2*q)*4 + i, acc0 + tt*32 + (2*q+1)*4 + i)
            a(f"buffer_store_dwordx4 {V(p,4)}, v9, {S(SWS,4)}, {S(sT0+tt)} offen offset:{i*1024} sc1")
def load_outw(a, rows0, nks, abase, gmul, soff):
    a(f"""v_lshrrev_b32 v5, 4, v1
    v_mul_u32_u24 v5, {gmul*1024}, v5
    v_and_b32 v6, 15, v1
    v_lshlrev_b32 v6, 4, v6
    s_lshl_b32 {S(sT1)}, {S(sW)}, 8
    v_add3_u32 v8, v5, v6, {S(sT1)}""")
    units = []
    for ks in range(nks):
        def sink(base, nd, ks=ks):
            for j in range(8):
                for r in range(4): perm_to(a, base, nd, j, r, ("a", abase + ks*32 + j*4 + r), 5 + (r & 1))
        units.append(([(rows0(ks) + jj) * 1024 for jj in range(8)], sink))
    load_w(a, units, SA, 8, 8, 16, 4, soff)

class FFRole(Role):
    prefer = 0; NL = 8; NS = 8; expect = 4; name = "RFF"
    def __init__(s, R): s.R = R
    def flag_off(s, a, dst, l, cur): cnt_s(a, dst, l, cur, 2)
    def prologue(s, a):
        a(f"""s_cmp_ge_u32 s44, {NFS}
        s_cselect_b32 {S(sC0)}, 1, 0
        s_cselect_b32 {S(sT0)}, {NFS}, 0
        s_mov_b32 {S(sC1)}, {S(sC0)}
        s_sub_u32 s41, s44, {S(sT0)}
        v_lshlrev_b32 v7, 4, v0
        v_lshlrev_b32 v9, 4, v1
        s_lshl_b32 {S(sOFF)}, s41, 15
        s_lshl_b32 {S(sT0)}, {S(sW)}, 12
        s_add_u32 {S(sOFF)}, {S(sOFF)}, {S(sT0)}
        s_add_u32 {S(sOFF)}, {S(sOFF)}, {P2}
        s_lshl_b32 {S(sT1)}, s41, 8
        s_lshl_b32 {S(sT0)}, {S(sW)}, 6
        s_add_u32 {S(sT1)}, {S(sT1)}, {S(sT0)}
        s_cmp_ge_u32 {S(sT1)}, 2752
        s_cselect_b32 {S(sT1)}, 0x10000000, {S(sT1)}
        v_lshrrev_b32 v5, 4, v1
        v_mul_u32_u24 v5, {32*2752}, v5
        v_and_b32 v6, 15, v1
        v_lshlrev_b32 v6, 2, v6
        v_add3_u32 v8, v5, v6, {S(sT1)}
        s_lshl_b32 {S(sT0)}, {S(sW)}, 10
        v_add_u32 v11, {S(sT0)}, v9
        v_add_u32 v11, 65536, v11
        v_add_u32 v10, 65536, v9""")
        srd(a, SA, K_W1, 512*2752)
        units = []
        for kk in range(16):
            def sink(base, nd, kk=kk):
                for j in range(2):
                    for r in range(4): perm_to(a, base, nd, j, r, ("a", kk*8 + j*4 + r), 5 + (r & 1))
            units.append(([(dmap0(kk) + jj) * 2752 for jj in range(8)], sink))
        load_w(a, units, SA, 8, 2, 16, 7)
        srd(a, SA, K_W2, 1376*1024)
        a(f"s_lshl_b32 {S(sOFF2)}, s41, 17")
        load_outw(a, lambda ks: 32*ks, 4, 128, 8, sOFF2)
    def loads(s, a, code): load_seg(a, XN1, code, 12)
    def stage(s, a): stage_seg(a, 12)
    def compute1(s, a):
        rd = lambda kk: [a(f"ds_read_b128 {V(80+(kk%4)*8+tt*4,4)}, v8 offset:{tt*16384+kk*1024}") for tt in range(2)]
        for kk in range(3): rd(kk)
        for kk in range(16):
            a(f"s_waitcnt lgkmcnt({2*(min(kk+3,16)-kk-1)})")
            for tt in range(2):
                for j in range(2):
                    acc = V(48 + tt*8 + j*4, 4)
                    a(f"{MF} {acc}, {A(kk*8+j*4,4)}, {V(80+(kk%4)*8+tt*4,4)}, {'0' if kk == 0 else acc}")
                if tt == 0 and kk + 3 < 16: rd(kk + 3)
        for i in range(16): a(f"v_mul_f32 {V(64+i)}, 0xbfb8aa3b, {V(48+i)}")
        for i in range(16): a(f"v_exp_f32 {V(64+i)}, {V(64+i)}")
        for i in range(16): a(f"v_add_f32 {V(64+i)}, 1.0, {V(64+i)}")
        for i in range(16): a(f"v_rcp_f32 {V(64+i)}, {V(64+i)}")
        for i in range(16): a(f"v_mul_f32 {V(48+i)}, {V(48+i)}, {V(64+i)}")
        for tt in range(2):
            for i in range(4): pk(a, 64+tt*4+i, 48+tt*8+i, 48+tt*8+4+i)
            a(f"ds_write_b128 v11, {V(64+tt*4,4)} offset:{tt*4096}")
    def compute2(s, a): out_gemm(a, 128, 4, 128, 80, 10, 0, 0, 4)
    def stores(s, a): out_stores(a, 128, 192, NFS)
    def signal(s, a, sk): cnt_s(a, sT0, 0, sPEND, 3); a("v_mov_b32 v5, 1")

SC = 128 ** -0.5 * 1.4426950408889634
import struct
def fbits(x): return "0x%08x" % struct.unpack("<I", struct.pack("<f", x))[0]
def softmax12(a, Sx, t, n=12):
    a(f"v_max3_f32 {V(t)}, {V(Sx)}, {V(Sx+1)}, {V(Sx+2)}")
    for i in range(3, n - 1, 2): a(f"v_max3_f32 {V(t)}, {V(t)}, {V(Sx+i)}, {V(Sx+i+1)}")
    a(f"v_max_f32 {V(t)}, {V(t)}, {V(Sx+n-1)}")
    xmax(a, t, t+1, (4, 5))
    a(f"v_mul_f32 {V(t)}, s45, {V(t)}")
    for i in range(n): a(f"v_fma_f32 {V(Sx+i)}, {V(Sx+i)}, s45, -{V(t)}")
    for i in range(n): a(f"v_exp_f32 {V(Sx+i)}, {V(Sx+i)}")
    a(f"v_add_f32 {V(t)}, {V(Sx)}, {V(Sx+1)}\nv_add_f32 {V(t+1)}, {V(Sx+2)}, {V(Sx+3)}")
    for i in range(4, n, 2): a(f"v_add_f32 {V(t)}, {V(t)}, {V(Sx+i)}\nv_add_f32 {V(t+1)}, {V(t+1)}, {V(Sx+i+1)}")
    a(f"v_add_f32 {V(t)}, {V(t)}, {V(t+1)}")
    xsum(a, t, t+1, (4, 5))
    a(f"v_rcp_f32 {V(t)}, {V(t)}")
class AWRole(Role):
    prefer = 0; NL = 28; NS = 8; expect = 0x205; name = "RAW"
    Q, K, Vx, KM, VM = 16, 32, 64, 96, 112
    def __init__(s, R): s.R = R
    def flag_off(s, a, dst, l, cur):
        a(f"s_lshl_b32 {S(dst)}, {S(cur)}, 4\ns_add_u32 {S(dst)}, {S(dst)}, s41\ns_lshl_b32 {S(dst)}, {S(dst)}, 6\ns_add_u32 {S(dst)}, {S(dst)}, {CNT_H + l*65536}")
    def prologue(s, a):
        a(f"""s_lshr_b32 {S(sC0)}, s44, 4
        s_mov_b32 {S(sC1)}, {S(sC0)}
        s_and_b32 s41, s44, 15
        s_mov_b32 s45, {fbits(SC)}
        v_lshlrev_b32 v9, 4, v1
        s_lshl_b32 {S(sOFF)}, s41, 15
        s_lshl_b32 {S(sT0)}, {S(sW)}, 12
        s_add_u32 {S(sOFF)}, {S(sOFF)}, {S(sT0)}
        s_add_u32 {S(sOFF)}, {S(sOFF)}, {P1}
        s_lshr_b32 s46, {S(sW)}, 1                     ; hh
        s_and_b32 s47, {S(sW)}, 1                      ; tt
        s_lshl_b32 s48, s41, 1
        s_add_u32 s48, s48, s46                        ; head
        v_lshrrev_b32 v5, 4, v1                        ; g
        v_and_b32 v6, 15, v1                           ; c
        v_lshrrev_b32 v10, 2, v6
        v_lshlrev_b32 v10, 5, v10
        v_and_b32 v11, 1, v1
        v_lshl_add_u32 v10, v11, 4, v10
        v_lshl_add_u32 v10, v5, 7, v10
        v_lshlrev_b32 v11, 3, v1
        s_lshl_b32 {S(sT0)}, s47, 4
        v_add_u32 v6, {S(sT0)}, v6
        v_lshlrev_b32 v5, 2, v5
        v_mov_b32 v13, {fbits(-1e9 * 128 ** 0.5)}
        s_lshl_b32 {S(sT0)}, s47, 13
        s_lshl_b32 {S(sT1)}, s46, 12
        s_add_u32 {S(sT0)}, {S(sT0)}, {S(sT1)}
        v_add_u32 v14, {S(sT0)}, v9""")
        for n in range(8):
            a(f"v_add_u32 v7, {16*(n//4) + n%4}, v5\nv_cmp_le_u32 {S(52+2*n,2)}, v7, v6")
        srd(a, SA, K_WO, 4194304)
        a(f"s_lshl_b32 {S(sOFF2)}, s41, 18")
        load_outw(a, lambda ks: 128*(ks//4) + 64*((ks%4)//2) + 8*(ks%2), 8, 0, 16, sOFF2)
    def loads(s, a, code):
        a(f"""s_mul_i32 {S(sT0)}, {S(code)}, 786432
        s_lshl_b32 {S(sT1)}, s48, 13
        s_add_u32 {S(sT0)}, {S(sT0)}, {S(sT1)}
        s_add_u32 {S(sT0)}, {S(sT0)}, {QKV}
        s_lshl_b32 {S(sT1)}, s47, 12
        s_add_u32 {S(sT1)}, {S(sT1)}, {S(sT0)}
        s_lshl_b32 {S(sT2)}, {S(code)}, 5
        s_add_u32 {S(sT2)}, {S(sT2)}, s48
        s_lshl_b32 {S(sT2)}, {S(sT2)}, 12
        s_add_u32 {S(sT2)}, {S(sT2)}, {KVM}""")
        ld = lambda r, so, o: a(f"buffer_load_dwordx4 {V(r,4)}, v9, {S(SWS,4)}, {S(so)} offen offset:{o} sc1")
        for k in range(4): ld(s.Q + 4*k, sT1, k*1024)
        for k in range(4): a(f"buffer_load_dwordx4 {V(s.KM+4*k,4)}, v10, {S(SWS,4)}, {S(sT2)} offen offset:{k*512} sc1")
        for base, add in ((s.K, 262144), (s.K+16, 4096), (s.Vx, 262144-4096), (s.Vx+16, 4096)):
            a(f"s_add_u32 {S(sT0)}, {S(sT0)}, {add}")
            for k in range(4): ld(base + 4*k, sT0, k*1024)
        for t in range(4): a(f"buffer_load_dwordx2 {V(s.VM+2*t,2)}, v11, {S(SWS,4)}, {S(sT2)} offen offset:{2048+t*512} sc1")
    def stage(s, a):
        Sx = 192
        for k in range(4):
            for n, kb in enumerate((s.K, s.K+16, s.KM)):
                acc = V(Sx+4*n, 4)
                a(f"{MF} {acc}, {V(kb+4*k,4)}, {V(s.Q+4*k,4)}, {'0' if k == 0 else acc}")
        for n in range(8): a(f"v_cndmask_b32 {V(Sx+n)}, v13, {V(Sx+n)}, {S(52+2*n,2)}")
        softmax12(a, Sx, 204, 10)
        a("v_mov_b32 v213, 0\nv_mov_b32 v214, 0")
        for i in range(10): a(f"v_mul_f32 {V(Sx+i)}, {V(Sx+i)}, v204")
        for i in range(5): pk(a, 208+i, Sx+2*i, Sx+2*i+1)
        pk(a, 215, Sx+8, Sx+9)
        O = 216
        for t in range(8): a(f"{MF} {V(O+4*t,4)}, {V(s.Vx+4*t,4)}, v[208:211], 0")
        for t in range(8): a(f"v_mfma_f32_16x16x16_bf16 {V(O+4*t,4)}, {V(s.VM+2*(t//2),2)}, {V(212+2*(t%2),2)}, {V(O+4*t,4)}")
        a(f"s_lshl_b32 {S(sT0)}, {S(sTOG)}, 14\nv_add_u32 v5, {S(sT0)}, v14\nv_add_u32 v8, {S(sT0)}, v9")
        for u in range(2):
            for v in range(2):
                p = 192 + 4*(2*u+v); D = lambda j, i: O + 4*(4*u+j) + i
                pk(a, p, D(0,2*v), D(1,2*v)); pk(a, p+1, D(2,2*v), D(3,2*v)); pk(a, p+2, D(0,2*v+1), D(1,2*v+1)); pk(a, p+3, D(2,2*v+1), D(3,2*v+1))
                a(f"ds_write_b128 v5, {V(p,4)} offset:{(2*u+v)*1024}")
    def compute1(s, a): out_gemm(a, 0, 8, 128, 192, 8, 0, 0, 4)
    def compute2(s, a): out_gemm(a, 0, 8, 128, 192, 8, 0, 4, 8)
    def stores(s, a): out_stores(a, 128, 216, 16)
    def signal(s, a, sk): cnt_s(a, sT0, 0, sPEND, 1); a("v_mov_b32 v5, 1")
```

```python
from emit import *
CNT_H = 0x0
CNT_S = 0x20000
ZERO_END = 0x28000
ENG = 0x40000; ENG_STRIDE = 0x50000; MEMB = 0x40000
XR = 0x0200000; XN = 0x0600000; X1 = 0x0A00000; XN1 = 0x0E00000
KVM = 0x1200000; QKV = 0x2200000; P1 = 0x8200000; P2 = 0xC200000
WS_BYTES = 0x10000000
NFS = 11
K_X, K_MEM0, K_WQ, K_WK, K_WV, K_WO, K_W1, K_W2, K_OUT, K_DBG, K_WS = 0, 8, 16, 24, 32, 40, 64, 72, 80, 88, 96
SWS = 4; SA = 8; SB = 12; sW = 16; sIDX = 17; sC0 = 18; sC1 = 19; sCUR = 20; sNXT = 21; sPEND = 22
sT0 = 24; sT1 = 25; sT2 = 26; sT3 = 27; sSTART = 28
sTOG = 30; sLO = 31; sHI = 32; sOFF = 33; sOFF2 = 34; sOFF3 = 35; sTM = 36
sEX = 38
sM1 = 96; sM2 = 98; sL0 = 92; sL1 = 93; sL2 = 94
TIMEOUT = 3000000
def srd(a, d, karg, nbytes):
    a(f"s_load_dwordx2 {S(d,2)}, s[0:1], {karg}")
    a(f"s_mov_b32 {S(d+2)}, {nbytes}\ns_mov_b32 {S(d+3)}, 0x00020000\ns_waitcnt lgkmcnt(0)")
def timeout_check(a, endlabel):
    a(f"s_memrealtime {S(sTM,2)}\ns_waitcnt lgkmcnt(0)\ns_sub_u32 {S(sTM)}, {S(sTM)}, {S(sSTART)}")
    a(f"s_cmp_gt_u32 {S(sTM)}, {TIMEOUT}\ns_cbranch_scc1 {endlabel}")
def load_w(a, units, srdreg, voff, ntiles, stage0, nslots, soff=None):
    nd = ntiles // 2
    suf = {1: "dword", 2: "dwordx2", 4: "dwordx4"}[nd]
    def issue(u):
        base = stage0 + (u % nslots) * 8 * nd
        for jj, ro in enumerate(units[u][0]):
            if soff is None: a(f"s_mov_b32 {S(sT0)}, {ro}")
            else: a(f"s_add_u32 {S(sT0)}, {S(soff)}, {ro}")
            a(f"buffer_load_{suf} {V(base+jj*nd, nd)}, {V(voff)}, {S(srdreg,4)}, {S(sT0)} offen")
    n = len(units)
    for u in range(min(nslots, n)): issue(u)
    for u in range(n):
        inflight = min(n, u + nslots) - u - 1
        a(f"s_waitcnt vmcnt({8*inflight})")
        base = stage0 + (u % nslots) * 8 * nd
        units[u][1](base, nd)
        if u + nslots < n: issue(u + nslots)
def perm_to(a, base, nd, j, r, dst, tmp):
    lo = base + (2 * r) * nd + j // 2; hi = base + (2 * r + 1) * nd + j // 2
    sel = sHI if j % 2 else sLO
    if dst[0] == "v": a(f"v_perm_b32 {V(dst[1])}, {V(hi)}, {V(lo)}, {S(sel)}")
    else: a(f"v_perm_b32 {V(tmp)}, {V(hi)}, {V(lo)}, {S(sel)}\nv_accvgpr_write_b32 {A(dst[1])}, {V(tmp)}")
def xsum(a, v, t, bits):
    for b in bits:
        if b == 3: a(f"v_add_f32_dpp {V(v)}, {V(v)}, {V(v)} row_ror:8 row_mask:0xf bank_mask:0xf")
        else:
            a(f"v_mov_b32 {V(t)}, {V(v)}\nv_permlane{16 if b == 4 else 32}_swap_b32 {V(v)}, {V(t)}\nv_add_f32 {V(v)}, {V(v)}, {V(t)}")
def xmax(a, v, t, bits):
    for b in bits:
        a(f"v_mov_b32 {V(t)}, {V(v)}\nv_permlane{16 if b == 4 else 32}_swap_b32 {V(v)}, {V(t)}\nv_max_f32 {V(v)}, {V(v)}, {V(t)}")
import os
PROF = int(os.environ.get("PROF", "0"))
def stamp(a, n):
    if PROF == 1: a(f"s_memrealtime s[{72+2*n}:{73+2*n}]\ns_waitcnt lgkmcnt(0)")
def prof_store(a, code, tv=248):
    if PROF != 1: return
    sk = a.label("Lpf")
    a(f"s_cmp_lg_u32 {S(sW)}, 0\ns_cbranch_scc1 {sk}\nv_mov_b32 {V(tv)}, {S(code)}\nv_mov_b32 {V(tv+1)}, s72\nv_mov_b32 {V(tv+2)}, s74\nv_mov_b32 {V(tv+3)}, s76")
    a(f"s_mov_b64 exec, 1\nbuffer_store_dwordx4 {V(tv,4)}, v2, {S(SWS,4)}, s70 offen\ns_mov_b64 exec, -1\n{sk}:\ns_add_u32 s70, s70, 16")
def pdone(a):
    if PROF == 1: a(f"s_memrealtime s[72:73]\ns_waitcnt lgkmcnt(0)\nv_mov_b32 v250, s72\nbuffer_store_dword v250, v2, {S(SWS,4)}, s70 offen offset:2040" if True else "")
ESN = []
def es(a, name, sreg=None):
    if PROF != 2 or name in os.environ.get("NOES", "").split(","): return
    n = len(ESN); ESN.append(name); assert n < 15
    a(f"s_memtime s[{72+2*n}:{73+2*n}]" if sreg is None else f"s_mov_b32 s{72+2*n}, s{sreg}")
def es_store(a, tv):
    if PROF != 2: return
    open("esn.txt", "w").write(" ".join(ESN))
    a("s_waitcnt lgkmcnt(0)")
    for i in range(16): a(f"v_mov_b32 {V(tv+i)}, s{72+2*min(i,14)}")
    a("s_mov_b64 exec, 1")
    for i in range(4): a(f"buffer_store_dwordx4 {V(tv+4*i,4)}, v2, {S(SWS,4)}, s70 offen offset:{16*i}")
    a("s_mov_b64 exec, -1\ns_add_u32 s70, s70, 64")
LDS_CODE = 163776
class Role:
    NI = 64; R = 1; prefer = 0; NS = 0; N1 = 0; D2 = True
    def flag_off(s, a, dst, l, cur): raise NotImplementedError
    def gen(s, a, end):
        nm = s.name
        NI = s.NI
        s.prologue(a)
        pdone(a)
        a(f"s_mov_b32 {S(sPEND)}, -1\ns_mov_b32 {S(sTOG)}, 0")
        def flagloads():
            for l, c in ((0, sC0), (1, sC1)):
                a(f"s_min_u32 {S(sT1)}, {S(c)}, {NI-1}")
                s.flag_off(a, sT0, l, sT1)
                a(f"buffer_load_dword {V(3+l)}, v2, {S(SWS,4)}, {S(sT0)} offen sc1")
        def decide():
            a(f"v_readfirstlane_b32 {S(sT1)}, v3\nv_readfirstlane_b32 {S(sT2)}, v4\ns_mov_b32 {S(sT0)}, -1")
            for l in ((1, 0) if s.prefer == 0 else (0, 1)):
                c = (sC0, sC1)[l]; sk = a.label("Lsk")
                a(f"s_cmp_ge_u32 {S(c)}, {NI}\ns_cbranch_scc1 {sk}\ns_cmp_lg_u32 {S(sT1+l)}, {s.expect}\ns_cbranch_scc1 {sk}")
                a(f"s_add_u32 {S(sT0)}, {S(c)}, {l*NI}\n{sk}:")
        def putcode(slot): a(f"v_mov_b32 v5, {S(sT0)}\nv_mov_b32 v6, {LDS_CODE}\nds_write_b32 v6, v5 offset:{4*slot}")
        def getcode(dst, slot): a(f"v_mov_b32 v6, {LDS_CODE}\nds_read_b32 v5, v6 offset:{4*slot}\ns_waitcnt lgkmcnt(0)\nv_readfirstlane_b32 {S(dst)}, v5")
        def w0decide(slot, pre=""):
            sk = a.label("Lw0")
            a(f"s_cmp_lg_u32 {S(sW)}, 0\ns_cbranch_scc1 {sk}\n{pre}"); decide(); putcode(slot); a(f"{sk}:")
        def burst(code):
            prep, L = s.loads(code); a(prep)
            for pre, ld in L: a(pre + "\n" + ld)
        def variant(fn, L, pre=""):
            a(pre); s.side = [p + "\n" + l for p, l in L]; fn(a); s.flush(a)
        def advance(code):
            l1 = a.label("Lad"); l2 = a.label("Lad")
            a(f"s_cmp_ge_u32 {S(code)}, {NI}\ns_cbranch_scc1 {l1}\ns_add_u32 {S(sC0)}, {S(sC0)}, {s.R}\ns_branch {l2}\n{l1}:\ns_add_u32 {S(sC1)}, {S(sC1)}, {s.R}\n{l2}:")
        def signal():
            sk = a.label("Lsg")
            a(f"s_cmp_lg_u32 {S(sW)}, 0\ns_cbranch_scc1 {sk}")
            s.signal(a, sk)
            a(f"s_mov_b64 {S(sEX,2)}, exec\ns_mov_b64 exec, 1\nbuffer_atomic_add v5, v2, {S(SWS,4)}, {S(sT0)} offen\ns_mov_b64 exec, {S(sEX,2)}\n{sk}:")
            a(f"s_mov_b32 {S(sPEND)}, -1")
        prep, L = s.loads(sNXT); NL = len(L); n1 = s.N1 or NL
        a(f"{nm}_B1:\ns_min_u32 {S(sT0)}, {S(sC0)}, {S(sC1)}\ns_cmp_ge_u32 {S(sT0)}, {NI}\ns_cbranch_scc1 {end}")
        a(f"s_cmp_lg_u32 {S(sW)}, 0\ns_cbranch_scc1 {nm}_B3\n{nm}_B2:")
        flagloads()
        a("s_waitcnt vmcnt(0)")
        decide()
        a(f"s_cmp_lg_u32 {S(sT0)}, -1\ns_cbranch_scc1 {nm}_B2x\ns_sleep 2")
        timeout_check(a, f"{nm}_B2x")
        a(f"s_branch {nm}_B2\n{nm}_B2x:")
        putcode(2)
        a(f"s_waitcnt lgkmcnt(0)\n{nm}_B3:\ns_barrier")
        getcode(sCUR, 2)
        a(f"s_cmp_eq_u32 {S(sCUR)}, -1\ns_cbranch_scc1 {end}\n{nm}_GO:")
        advance(sCUR)
        burst(sCUR)
        flagloads()
        a(f"s_cmp_eq_u32 {S(sPEND)}, -1\ns_cbranch_scc1 {nm}_G1\ns_waitcnt vmcnt({NL+2})\ns_barrier")
        signal()
        a(f"{nm}_G1:\ns_waitcnt vmcnt(0)\n{nm}_TOP:\ns_xor_b32 {S(sTOG)}, {S(sTOG)}, 1")
        stamp(a, 0)
        w0decide(0)
        s.stage(a)
        a("s_waitcnt lgkmcnt(0)\ns_barrier")
        stamp(a, 1)
        getcode(sNXT, 0)
        def midsig():
            sk = a.label("Lms")
            a(f"s_cmp_eq_u32 {S(sPEND)}, -1\ns_cbranch_scc1 {sk}"); signal(); a(f"{sk}:"); flagloads()
        a(f"s_cmp_eq_u32 {S(sNXT)}, -1\ns_cbranch_scc1 {nm}_T1")
        advance(sNXT)
        variant(s.compute1, L[:n1], prep)
        a(f"s_waitcnt vmcnt({n1}) lgkmcnt(0)\ns_barrier")
        if n1 < NL:
            midsig(); variant(s.compute2, L[n1:]); a(f"s_branch {nm}_T6")
        else: a(f"s_branch {nm}_T4")
        a(f"{nm}_T1:")
        if s.D2: flagloads()
        variant(s.compute1, [])
        a("s_waitcnt vmcnt(0)")
        if s.D2: w0decide(1)
        a("s_waitcnt lgkmcnt(0)\ns_barrier")
        if s.D2:
            getcode(sNXT, 1)
            a(f"s_cmp_eq_u32 {S(sNXT)}, -1\ns_cbranch_scc1 {nm}_T4")
            advance(sNXT)
            midsig(); variant(s.compute2, L, prep); a(f"s_branch {nm}_T6")
        a(f"{nm}_T4:")
        midsig(); variant(s.compute2, [])
        a(f"{nm}_T6:")
        stamp(a, 2); prof_store(a, sCUR)
        s.stores(a)
        a(f"s_mov_b32 {S(sPEND)}, {S(sCUR)}\ns_mov_b32 {S(sCUR)}, {S(sNXT)}\ns_waitcnt vmcnt({s.NS})\ns_cmp_lg_u32 {S(sNXT)}, -1\ns_nop 5\ns_cbranch_scc1 {nm}_TOP")
        w0decide(2)
        a("s_waitcnt lgkmcnt(0)\ns_barrier")
        getcode(sCUR, 2)
        a(f"s_cmp_lg_u32 {S(sCUR)}, -1\ns_cbranch_scc1 {nm}_GO\ns_waitcnt vmcnt(0)\ns_barrier")
        signal()
        a(f"s_branch {nm}_B1")
    def fill(s, a, n=1):
        for _ in range(n):
            if s.side: a(s.side.pop(0))
    def flush(s, a): s.fill(a, 99)
```

```python
from roles2 import *
SM = "v_smfmac_f32_16x16x64_bf16"
JS = 544; US = 4*JS
L_KV = 131072; L_MEM = 147456; L_K = L_MEM; L_Q = 155648; L_O = L_Q + 2*US; L_SEL = L_O + 2048
assert L_SEL + 1024 <= 163840
W1 = int(os.environ.get('W1', '8'))
sL, sH, sS, sFAST, sTAG, sPB, sMW, sMR, sMZ = 40, 41, 42, 43, 46, 47, 48, 49, 50
sMLO, sMHI, sMG2, sM8 = 52, 54, 56, 58
sKV, sKVM, sFLG, sSIG, sKOK, sPB2, sSM = 60, 61, 62, 63, 64, 65, 66
def gen_engine(a, end):
    a(f"s_lshr_b32 {S(sL)}, s44, 5\ns_and_b32 {S(sH)}, s44, 31\ns_mov_b32 s45, {fbits(SC)}\ns_mov_b32 s44, s45")
    a(f"""v_lshrrev_b32 v5, 4, v1
    v_and_b32 v6, 15, v1
    v_lshrrev_b32 v7, 1, v5
    v_and_b32 v9, 1, v5
    v_lshlrev_b32 v10, 4, v7
    v_lshl_add_u32 v11, v9, 2, v10          ; 16*(g/2)+4*(g%2)
    v_lshl_add_u32 v12, v9, 1, v10          ; 16*(g/2)+2*(g%2)
    v_lshlrev_b32 v11, 13, v11
    v_lshlrev_b32 v12, 10, v12
    s_lshl_b32 {S(sT1)}, {S(sH)}, 8
    s_and_b32 {S(sT2)}, {S(sW)}, 1
    v_lshlrev_b32 v13, 3, v6
    s_lshr_b32 {S(sT3)}, {S(sW)}, 1
    s_lshl_b32 {S(sT3)}, {S(sT3)}, 7
    s_lshl_b32 {S(sT2)}, {S(sT2)}, 2
    s_add_u32 {S(sT3)}, {S(sT3)}, {S(sT2)}
    s_add_u32 {S(sT3)}, {S(sT3)}, {S(sT1)}
    v_add3_u32 v14, v11, v13, {S(sT3)}       ; v voffset
    s_lshl_b32 {S(sT3)}, {S(sW)}, 8
    v_lshlrev_b32 v13, 4, v6
    v_add3_u32 v15, v12, v13, {S(sT3)}
    s_lshl_b32 {S(sT3)}, {S(sW)}, 15
    v_lshlrev_b32 v6, 4, v1
    v_add_u32 v6, {S(sT3)}, v6
    s_mov_b32 s68, 0x3f803f80
    s_mov_b32 s69, 0x3f803f80""")
    drow = lambda b, hh: [(64*b + 32*hh + 8*((j%4)//2) + 2*(j//4) + j%2) * 8192 for j in range(8)]
    for mat, karg in enumerate((K_WQ, K_WK, K_WV)):
        srd(a, SA, karg, 4194304)
        units = []
        for b in range(8):
            for hh in range(2):
                def sink(base, nd, b=b, hh=hh):
                    for j in range(2):
                        for r in range(4):
                            if mat: dst = ("a", (mat-1)*128 + b*16 + j*8 + hh*4 + r)
                            else: dst = ("v", (120 + 4*j + r) if b < 4 else (128 + (b-4)*16 + j*8 + hh*4 + r))
                            perm_to(a, base, nd, j, r, dst, 4 + (r & 1))
                        if mat == 0 and b < 4: a(f"ds_write_b128 v6, {V(120+4*j,4)} offset:{b*4096 + j*2048 + hh*1024}")
                units.append((drow(b, hh), sink))
        load_w(a, units, SA, 14, 2, 16, 7)
    srd(a, SA, K_WO, 4194304)
    units = []
    for b in range(2):
        for hh in range(2):
            def sink(base, nd, b=b, hh=hh):
                for j in range(8):
                    for r in range(4): perm_to(a, base, nd, j, r, ("v", (192 + (j*2+b)*8 + hh*4 + r) if j < 4 else (120 + 4*(j%2) + r)), 0)
                    if j >= 4: a(f"ds_write_b128 v6, {V(120+4*(j%2),4)} offset:{16384 + ((j-4)*2+b)*2048 + hh*1024}")
            units.append(([(64*b + 32*hh + 8*(j//4) + 4*(j%2) + (j%4)//2) * 1024 for j in range(8)], sink))
    a(f"s_lshl_b32 {S(sOFF2)}, {S(sH)}, 17")
    load_w(a, units, SA, 15, 8, 16, 3, sOFF2)
    srd(a, SA, K_MEM0, 8192)
    a(f"""v_lshrrev_b32 v5, 4, v0
    v_lshlrev_b32 v5, 5, v5
    v_bfe_u32 v7, v0, 1, 1
    v_lshl_add_u32 v5, v7, 4, v5
    v_bfe_u32 v7, v0, 2, 2
    v_lshl_add_u32 v5, v7, 11, v5
    v_and_b32 v7, 1, v0
    v_lshl_add_u32 v5, v7, 10, v5
    buffer_load_dwordx4 v[16:19], v5, {S(SA,4)}, 0 offen
    buffer_load_dwordx4 v[20:23], v5, {S(SA,4)}, 0 offen offset:512
    v_lshlrev_b32 v5, 4, v0
    v_add_u32 v5, {L_MEM}, v5
    s_waitcnt vmcnt(0)
    ds_write_b128 v5, v[16:19]
    ds_write_b128 v5, v[20:23] offset:4096
    v_lshrrev_b32 v16, 4, v1                 ; g
    v_and_b32 v17, 15, v1                    ; c
    v_and_b32 v18, 2, v1
    v_cmp_eq_u32 {S(sMLO,2)}, 0, v18
    v_cmp_ne_u32 {S(sMHI,2)}, 0, v18
    v_mov_b32 v4, 0xeeee
    v_mov_b32 v5, 0x4444
    v_cndmask_b32 v4, v4, v5, {S(sMLO,2)}
    s_mov_b32 {S(sM8)}, 0x00ff00ff
    s_mov_b32 {S(sM8+1)}, 0
    v_lshlrev_b32 v7, 4, v1
    v_mov_b32 v13, v7
    v_add_u32 v7, {L_KV}, v7
    v_and_b32 v21, 1, v1
    v_lshlrev_b32 v21, 4, v21
    v_mov_b32 v22, 0x3f80
    v_lshlrev_b32 v21, v21, v22
    v_lshrrev_b32 v20, 1, v17""")
    for r in range(4): a(f"v_cmp_eq_u32 vcc, {r}, v20\nv_cndmask_b32 {V(24+r)}, 0, v21, vcc")
    a(f"""ds_write_b128 v7, v[24:27] offset:{L_SEL-L_KV}
    s_mul_i32 {S(sT0)}, {S(sW)}, {2*JS}
    s_add_u32 {S(sT0)}, {S(sT0)}, {L_K}
    v_lshlrev_b32 v8, 5, v17
    v_lshl_add_u32 v8, v16, 3, v8
    v_add_u32 v8, {S(sT0)}, v8
    ; tr read addr = L_QK + (c/4)*JS + g*128 + (c%4)*8
    v_lshrrev_b32 v9, 2, v17
    v_mul_u32_u24 v9, {JS}, v9
    v_lshl_add_u32 v9, v16, 7, v9
    v_and_b32 v5, 3, v17
    v_lshl_add_u32 v9, v5, 3, v9
    v_add_u32 v9, {L_K}, v9
    s_lshr_b32 {S(sT0)}, {S(sW)}, 1
    s_lshl_b32 {S(sT0)}, {S(sT0)}, 10
    s_and_b32 {S(sT1)}, {S(sW)}, 1
    s_lshl_b32 {S(sT1)}, {S(sT1)}, 3
    s_add_u32 {S(sT0)}, {S(sT0)}, {S(sT1)}
    s_add_u32 {S(sT0)}, {S(sT0)}, {L_O}
    v_add_u32 v10, {S(sT0)}, v13
    s_lshl_b32 {S(sT0)}, {S(sW)}, 11
    v_add_u32 v11, {S(sT0)}, v7
    ; partial store voffset = (8w + c/2)*8192 + h*256 + ((c%2)*4+g)*16
    v_lshrrev_b32 v12, 1, v17
    v_lshlrev_b32 v12, 13, v12
    v_and_b32 v5, 1, v17
    v_lshl_add_u32 v12, v5, 6, v12
    v_lshl_add_u32 v12, v16, 4, v12
    s_lshl_b32 {S(sT0)}, {S(sW)}, 16
    s_lshl_b32 {S(sT1)}, {S(sH)}, 8
    s_add_u32 {S(sT0)}, {S(sT0)}, {S(sT1)}
    v_add_u32 v12, {S(sT0)}, v12
    s_mul_i32 {S(sPB)}, {S(sL)}, {ENG_STRIDE}
    s_add_u32 {S(sPB)}, {S(sPB)}, {ENG}
    s_add_u32 {S(sPB2)}, {S(sPB)}, 4096
    s_add_u32 {S(sMW)}, {S(sPB)}, {MEMB}
    s_add_u32 {S(sMR)}, {S(sMW)}, 8192
    s_add_u32 {S(sMZ)}, {S(sMR)}, 8192
    s_cmp_eq_u32 {S(sW)}, 3
    s_cselect_b32 s51, 1, 0
    s_mul_i32 {S(sKV)}, {S(sL)}, {64*786432}
    s_lshl_b32 {S(sT0)}, {S(sH)}, 13
    s_add_u32 {S(sKV)}, {S(sKV)}, {S(sT0)}
    s_lshl_b32 {S(sT0)}, {S(sW)}, 12
    s_add_u32 m0, {S(sT0)}, {L_KV}
    s_and_b32 {S(sT0)}, {S(sT0)}, 4096
    s_add_u32 {S(sKV)}, {S(sKV)}, {S(sT0)}
    s_lshr_b32 {S(sT0)}, {S(sW)}, 1
    s_lshl_b32 {S(sT0)}, {S(sT0)}, 18
    s_add_u32 {S(sKV)}, {S(sKV)}, {S(sT0)}
    s_add_u32 {S(sKV)}, {S(sKV)}, {QKV + 262144 - L_KV}
    s_lshl_b32 {S(sKVM)}, {S(sL)}, 23
    s_lshl_b32 {S(sT0)}, {S(sH)}, 12
    s_add_u32 {S(sKVM)}, {S(sKVM)}, {S(sT0)}
    s_add_u32 {S(sKVM)}, {S(sKVM)}, {KVM}
    s_lshl_b32 {S(sFLG)}, {S(sL)}, 16
    s_lshr_b32 {S(sT0)}, {S(sH)}, 1
    s_lshl_b32 {S(sT0)}, {S(sT0)}, 6
    s_add_u32 {S(sFLG)}, {S(sFLG)}, {S(sT0)}
    s_sub_u32 {S(sSIG)}, {S(sFLG)}, 2048
    s_mov_b32 {S(sS)}, -1
    s_mov_b32 {S(sTAG)}, 0
    s_mov_b64 {S(sSM,2)}, 0
    v_lshrrev_b32 v13, 3, v1
    v_lshlrev_b32 v13, 8, v13
    v_and_b32 v5, 7, v1
    v_lshl_add_u32 v13, v5, 4, v13
    s_lshl_b32 {S(sT0)}, {S(sH)}, 13
    s_lshl_b32 {S(sT1)}, {S(sW)}, 7
    s_add_u32 {S(sT0)}, {S(sT0)}, {S(sT1)}
    v_add_u32 v13, {S(sT0)}, v13
    v_and_b32 v14, 3, v1
    v_lshlrev_b32 v14, 6, v14
    v_bfe_u32 v5, v1, 2, 1
    v_lshl_add_u32 v14, v5, 5, v14
    v_lshl_add_u32 v14, v16, 3, v14
    s_lshl_b32 {S(sT0)}, {S(sH)}, 8
    s_lshl_b32 {S(sT1)}, {S(sW)}, 4
    s_add_u32 {S(sT0)}, {S(sT0)}, {S(sT1)}
    v_add_u32 v14, {S(sT0)}, v14
    s_lshl_b32 {S(sT0)}, {S(sW)}, 12
    v_lshlrev_b32 v15, 4, v1
    v_add_u32 v15, {S(sT0)}, v15
    v_add_u32 v0, {L_MEM}, v15
    v_lshlrev_b32 v5, 2, v1
EN_F1:
    buffer_load_dword v3, v5, {S(SB,4)}, 0 offen sc1
    s_waitcnt vmcnt(0)
    v_readlane_b32 {S(sT0)}, v3, {S(sL)}
    v_readlane_b32 {S(sT1)}, v3, 8
    s_mov_b32 {S(sFAST)}, 1
    s_cmp_ge_u32 {S(sT0)}, 32
    s_cbranch_scc1 EN_F2
    s_mov_b32 {S(sFAST)}, 0
    s_cmp_ge_u32 {S(sT1)}, 256
    s_cbranch_scc1 EN_F3""")
    timeout_check(a, end)
    a(f"""s_branch EN_F1
EN_F3:
    buffer_load_dword v3, v5, {S(SB,4)}, 0 offen sc1
    s_waitcnt vmcnt(0)
    v_readlane_b32 {S(sT0)}, v3, {S(sL)}
    s_cmp_ge_u32 {S(sT0)}, 32
    s_cselect_b32 {S(sFAST)}, 1, 0
EN_F2:
    v_mov_b32 v3, 0
    v_lshrrev_b32 v5, 2, v17
    v_lshlrev_b32 v5, 5, v5
    v_and_b32 v18, 1, v1
    v_lshl_add_u32 v5, v18, 4, v5
    v_lshl_add_u32 v5, v16, 7, v5
    s_lshr_b32 {S(sT0)}, {S(sW)}, 1
    s_mul_i32 {S(sT0)}, {S(sT0)}, {US}
    s_and_b32 {S(sT1)}, {S(sW)}, 1
    s_lshl_b32 {S(sT1)}, {S(sT1)}, 6
    s_add_u32 {S(sT0)}, {S(sT0)}, {S(sT1)}
    v_add_u32 v1, {S(sT0)}, v9
    s_lshl_b32 {S(sT0)}, {S(sW)}, 9
    s_add_u32 {S(sKVM)}, {S(sKVM)}, {S(sT0)}""")
    RING = 64
    def ring(b0=0, b1=4):
        for b in range(b0, b1):
            for q in range(4): a(f"ds_read_b128 {V(RING+b*16+q*4,4)}, v6 offset:{b*4096+q*1024}")
    def zero(r, n):
        return [f"v_mov_b64 {V(r+2*i,2)}, 0" for i in range(n // 2)]
    def flag_wait(tag):
        a(f"""EN_KV{tag}:
        v_readfirstlane_b32 {S(sT0)}, v3
        s_lshr_b32 {S(sT0)}, {S(sT0)}, 8
        s_cmp_eq_u32 {S(sT0)}, 2
        s_cbranch_scc1 EN_KVG{tag}
        buffer_load_dword v3, v2, {S(SWS,4)}, {S(sFLG)} offen sc1""")
        timeout_check(a, end)
        a(f"s_waitcnt vmcnt(0)\ns_branch EN_KV{tag}\nEN_KVG{tag}:")
    dma = [f"buffer_load_dwordx4 v7, {S(SWS,4)}, {S(sKV)} offen offset:{i*1024} sc1 lds" for i in range(4)]
    dma += [f"buffer_load_dword v3, v2, {S(SWS,4)}, {S(sFLG)} offen offset:1024 sc1"]
    adv = f"s_add_u32 {S(sKV)}, {S(sKV)}, 786432\ns_add_u32 {S(sFLG)}, {S(sFLG)}, 1024"
    def trread(dst, mat, ks):
        return [f"ds_read_b64_tr_b16 {V(dst+ks*4+x*2,2)}, v9 offset:{(1-mat)*(L_Q-L_K) + (ks//2)*US + (2*(ks%2)+x)*32}" for x in range(2)]
    def sig(r): return f"v_mov_b32 {V(r)}, 1\ns_mov_b64 exec, {S(sSM,2)}\nbuffer_atomic_add {V(r)}, v2, {S(SWS,4)}, {S(sSIG)} offen\ns_mov_b64 exec, -1"
    def store2(txt):
        l1 = a.label("EN_ss"); l2 = a.label("EN_ss")
        a(f"s_cbranch_scc1 {l1}")
        a(txt.replace("@", "")); a(f"s_branch {l2}\n{l1}:"); a(txt.replace("@", " sc1")); a(f"{l2}:")
    class LG:
        n = 0; at = {}
    def ds(x, tag=None):
        a(x); LG.n += 1
        if tag: LG.at[tag] = LG.n
    def wait(tag): a(f"s_waitcnt lgkmcnt({min(15, LG.n - LG.at[tag])})")
    def put(x):
        if isinstance(x, tuple): ds(*x)
        elif x.startswith("ds_"): ds(x)
        else: a(x)
    def weave(main, side, per=1):
        for m in main:
            if callable(m): m(); continue
            a(m)
            for _ in range(per):
                if side: put(side.pop(0))
    a("s_waitcnt lgkmcnt(0)")
    if PROF == 1: a(f"s_memrealtime s[72:73]\ns_waitcnt lgkmcnt(0)\nv_mov_b32 v50, s72\nbuffer_store_dword v50, v2, {S(SWS,4)}, s70 offen offset:2040")
    flag_wait("A"); a("\n".join(dma)); a(adv + "\ns_waitcnt vmcnt(0)")
    ring()
    for x in zero(16, 16): a(x)
    a("EN_STEP:\ns_waitcnt lgkmcnt(0)\ns_barrier")
    stamp(a, 0); es(a, "T0")
    MEMF, QA, KA, K0, K1, Q, AV, Sx, KM, SMr, t, VX = 32, 16, 24, 64, 80, 96, 112, 120, 64, 32, 36, 16
    for b in range(8): ds(f"ds_read_b128 {V(MEMF+4*b,4)}, v7 offset:{L_MEM-L_KV+b*1024}", ("m", b))
    side = [f"s_mov_b32 {S(sT0)}, {S(sMZ)}\ns_mov_b32 {S(sMZ)}, {S(sMW)}", f"s_mov_b32 {S(sMW)}, {S(sMR)}\ns_mov_b32 {S(sMR)}, {S(sT0)}",
            f"s_xor_b32 {S(sTAG)}, {S(sTAG)}, 1\ns_add_u32 {S(sS)}, {S(sS)}, 1", f"s_add_u32 {S(sSIG)}, {S(sSIG)}, 1024"]
    kx = lambda i: (f"ds_read_b128 {V(K0+4*i,4)}, v7 offset:{i*1024}", ("q", i % 4))
    for b in range(8):
        wait(("m", b))
        w = [V(RING+b*16+j*8,8) if b < 4 else V(128+(b-4)*16+j*8,8) for j in range(2)]
        if b == 2: side += [kx(i) for i in (0, 4, 1, 5)]
        if b == 4: side += zero(AV, 8) + [sig(Sx), f"s_mov_b32 {S(sSM)}, s51"]
        weave([f"{SM} {V(QA+4*j,4)}, {V(MEMF+4*b,4)}, {w[j]}, v4" for j in range(2)], side)
    assert not side
    es(a, "Q")
    def post(x, mat, j): return [f"v_pk_add_f32 {V(x,2)}, {V(x,2)}, {V(x+2,2)}", f"v_cvt_pk_bf16_f32 {V(x+2)}, {V(x)}, {V(x+1)}", f"v_cvt_pk_bf16_f32 {V(x+3)}, {V(x)}, {V(x+1)}",
                                 f"ds_write_b64 v8, {V(x+2,2)} offset:{(1-mat)*(L_Q-L_K) + j*JS}"]
    km = [f"{SM} {V(KA+4*j,4)}, {V(MEMF+4*b,4)}, {A(b*16+j*8,8)}, v4" for b in range(8) for j in range(2)]
    vm = [f"{SM} {V(AV+4*j,4)}, {V(MEMF+4*b,4)}, {A(128+b*16+j*8,8)}, v4" for b in range(8) for j in range(2)]
    pop = lambda L, n: [L.pop(0) for _ in range(n)]
    weave(pop(km, 3), [])
    weave(pop(km, 4), post(QA, 0, 0) + post(QA+4, 0, 1), 2)
    weave(pop(km, 3), [f"v_readfirstlane_b32 {S(sT0)}, v3", f"s_lshr_b32 {S(sT0)}, {S(sT0)}, 8", f"s_cmp_eq_u32 {S(sT0)}, 2\ns_cselect_b32 {S(sKOK)}, 1, 0"])
    a("s_waitcnt lgkmcnt(0)\ns_barrier")
    side = []
    for ks in range(4): side += [(x, ("q", ks)) for x in trread(Q, 0, ks)] + ([kx(ks), kx(ks+4)] if ks >= 2 else [])
    side += [f"ds_read_b128 {V(VX+4*i,4)}, v11 offset:{8192+i*1024}" for i in range(2)]
    weave(pop(km, 6), side, 2)
    es(a, "K")
    weave(pop(vm, 2), side); assert not side
    sx = []
    for ks in range(4):
        sx.append(lambda ks=ks: wait(("q", ks)))
        for acc, kb in ((Sx, K0), (Sx+4, K1)): sx.append(f"{MF} {V(acc,4)}, {V(kb+4*ks,4)}, {V(Q+4*ks,4)}, {'0' if ks == 0 else V(acc,4)}")
    weave(sx, post(KA, 1, 0) + post(KA+4, 1, 1), 2)
    es(a, "Sx")
    a("s_waitcnt lgkmcnt(0)\ns_barrier")
    es(a, "BK")
    WS = lambda n: (80, 88, 96, 104, 64, 72, 48, 56)[n]
    wsr = [f"ds_read_b128 {V(WS(n)+4*q,4)}, v6 offset:{16384+n*2048+q*1024}" for n in range(8) for q in range(2)]
    side = [(x, ("k", ks)) for ks in range(4) for x in trread(KM, 1, ks)]
    weave(pop(vm, 4), side, 2)
    for x in range(2): ds(f"ds_read_b64_tr_b16 {V(KA+2*x,2)}, v1 offset:{32*x}", "kp")
    side = [f"v_max3_f32 {V(t)}, {V(Sx)}, {V(Sx+1)}, {V(Sx+2)}", f"v_max3_f32 {V(t+1)}, {V(Sx+3)}, {V(Sx+4)}, {V(Sx+5)}", f"v_max3_f32 {V(t)}, {V(t)}, {V(Sx+6)}, {V(Sx+7)}"] + pop(wsr, 1)
    weave(pop(vm, 2), side, 2)
    side = pop(wsr, 3) + list(dma) + [adv]
    for ks in range(4):
        if ks == 1: a("s_cbranch_scc0 EN_ND"); n0 = len(a.out)
        wait(("k", ks))
        weave([f"{MF} {V(SMr,4)}, {V(KM+4*ks,4)}, {V(Q+4*ks,4)}, {'0' if ks == 0 else V(SMr,4)}"], side, 2)
        weave(pop(vm, 1), side)
        if ks == 2: nodma = [x for x in a.out[n0:] if "buffer_load" not in x and "s_add_u32" not in x]; a("EN_NDR:")
    assert not side
    es(a, "Sm")
    OA, OB, SU, ON = 24, 28, 40, 44
    wait("kp")
    side += [f"s_mov_b64 exec, {S(sMLO,2)}\nbuffer_store_dwordx4 {V(KA,4)}, v5, {S(SWS,4)}, {S(sKVM)} offen sc1\ns_mov_b64 exec, -1"] + pop(wsr, 6)
    weave(pop(vm, 2), side, 3)
    a(f"v_max3_f32 {V(t+1)}, {V(t+1)}, {V(SMr)}, {V(SMr+1)}\nv_max_f32 {V(t)}, {V(t)}, {V(t+1)}\nv_max_f32 {V(t+1)}, {V(t)}, {V(t+1)}")
    weave(pop(vm, 1), side)
    a(f"v_permlane16_swap_b32 {V(t)}, {V(t+1)}\nv_max_f32 {V(t)}, {V(t)}, {V(t+1)}\nv_max_f32 {V(t+1)}, {V(t)}, {V(t+1)}")
    weave(pop(vm, 1), pop(wsr, 1)); assert not vm and not side
    a(f"v_permlane32_swap_b32 {V(t)}, {V(t+1)}\nv_max_f32 {V(t)}, {V(t)}, {V(t+1)}")
    es(a, "max")
    SR = [Sx + i for i in range(8)] + [SMr, SMr + 1]
    a(f"v_mul_f32 {V(t)}, s45, {V(t)}")
    for i in range(0, 10, 2): a(f"v_pk_fma_f32 {V(SR[i],2)}, {V(SR[i],2)}, s[44:45], {V(t,2)} op_sel:[0,1,0] op_sel_hi:[1,1,0] neg_lo:[0,0,1] neg_hi:[0,0,1]")
    side = wsr + [f"v_mov_b64 {V(ON,2)}, s[68:69]", f"v_mov_b64 {V(ON+2,2)}, s[68:69]", f"v_lshrrev_b32 {V(t+2)}, 1, v7\ns_add_u32 {S(sT0)}, {S(sKVM)}, {2048 - L_KV//2}"]
    weave([f"v_exp_f32 {V(SR[i])}, {V(SR[i])}" for i in range(10)], side); assert not side
    for i in range(4): pk(a, Sx+i, Sx+2*i, Sx+2*i+1)
    pk(a, SMr, SMr, SMr+1)
    es(a, "exp")
    PM = SMr + 2
    side = [f"v_cndmask_b32 {V(PM)}, 0, {V(SMr)}, {S(sMLO,2)}", f"v_cndmask_b32 {V(PM+1)}, 0, {V(SMr)}, {S(sMHI,2)}"]
    side += [f"v_pk_add_f32 {V(AV+4*j,2)}, {V(AV+4*j,2)}, {V(AV+4*j+2,2)}" for j in range(2)]
    side += [f"v_cvt_pk_bf16_f32 {V(AV+2)}, {V(AV)}, {V(AV+1)}", f"v_cvt_pk_bf16_f32 {V(AV+3)}, {V(AV+4)}, {V(AV+5)}"]
    weave([f"{MF} {V(d,4)}, {V(x,4)}, {V(Sx,4)}, 0" for d, x in ((SU, ON), (OA, VX), (OB, VX+4))], side, 2)
    side = [f"buffer_store_dwordx2 {V(AV+2,2)}, {V(t+2)}, {S(SWS,4)}, {S(sT0)} offen sc1", f"s_add_u32 {S(sKVM)}, {S(sKVM)}, 131072\ns_cmp_eq_u32 {S(sS)}, 63"] + zero(Sx, 8)
    weave([f"v_mfma_f32_16x16x16_bf16 {V(d,4)}, {V(x,2)}, {V(PM,2)}, {V(d,4)}" for d, x in ((SU, ON), (OA, AV+2), (OB, AV+2))], side, 2)
    a(f"v_rcp_f32 {V(t)}, {V(SU)}")
    for x in zero(16, 8) + zero(AV, 2): a(x)
    for i in range(4): a(f"v_cndmask_b32 {V(OA+i)}, {V(OB+i)}, {V(OA+i)}, {S(sMLO,2)}")
    for i in range(2): a(f"v_pk_mul_f32 {V(OA+2*i,2)}, {V(OA+2*i,2)}, {V(t,2)} op_sel_hi:[1,0]")
    for i in range(2): pk(a, t+2+i, OA+2*i, OA+2*i+1)
    a(f"ds_write_b64 v10, {V(t+2,2)}")
    es(a, "PV")
    for x in zero(24, 8) + zero(AV+2, 6): a(x)
    a("s_waitcnt lgkmcnt(0)\ns_barrier\ns_cbranch_scc1 EN_LAST")
    OF, G = 32, 40
    for b in range(2): a(f"ds_read_b128 {V(OF+4*b,4)}, v7 offset:{L_O-L_KV+b*1024}")
    a(f"s_cmp_eq_u32 {S(sFAST)}, 0")
    es(a, "BO")
    WA = lambda j: (16 + 4*j) if j < 4 else (112 + 4*(j-4))
    WW = lambda j, b: (192 + (j*2+b)*8) if j < 4 else WS((j-4)*2+b)
    def wpost(j):
        r = [f"v_pk_add_f32 {V(WA(j),2)}, {V(WA(j),2)}, {V(WA(j)+2,2)}"]
        if j % 2: r += [f"v_cvt_pk_bf16_f32 {V(G+4*rr+j//2)}, {V(WA(j-1)+rr)}, {V(WA(j)+rr)}" for rr in range(2)]
        if j == 1: r += [f"v_and_or_b32 {V(G+4*rr)}, {V(G+4*rr)}, -2, {S(sTAG)}" for rr in range(2)]
        return r
    side = []
    for jp in range(4):
        for n, (b, j) in enumerate(((0, 2*jp), (0, 2*jp+1), (1, 2*jp), (1, 2*jp+1))):
            if jp == 0 and n % 2 == 0: a(f"s_waitcnt lgkmcnt({1-b})")
            a(f"{SM} {V(WA(j),4)}, {V(OF+4*b,4)}, {V(WW(j,b),8)}, v4")
            if jp >= 1 and n == 3: side += wpost(2*jp-2) + wpost(2*jp-1)
            for _ in range(1 if jp < 3 else 2):
                if side: a(side.pop(0))
    es(a, "wo")
    side += wpost(6) + wpost(7)
    for x in side: a(x)
    store2("\n".join(f"buffer_store_dwordx4 {V(G+4*rr,4)}, v12, {S(SWS,4)}, {S(sPB)} offen offset:{rr*128}@" for rr in range(2)))
    stamp(a, 1); es(a, "st")
    a(f"ds_read_b128 v[48:51], v7 offset:{L_SEL-L_KV}")
    ring()
    a("v_mov_b64 v[56:57], -1")
    for x in zero(16, 16): a(x)
    a(f"s_cmp_ge_u32 {S(sW)}, 2\ns_cbranch_scc1 EN_NEXT")
    MK = (18, 20, 22, 56)
    def poll(nm, ld, chk, done):
        a(f"s_mov_b32 {S(sT3)}, 0")
        es(a, nm + "i")
        for i in range(4): a(ld(i))
        a(f"{nm}:")
        for i in range(4): a(f"s_waitcnt vmcnt({3-i})"); chk(i)
        a(f"""s_or_b64 vcc, {S(MK[0],2)}, {S(MK[1],2)}
        s_or_b64 {S(sEX,2)}, {S(MK[2],2)}, {S(MK[3],2)}
        s_or_b64 vcc, vcc, {S(sEX,2)}
        s_cbranch_scc0 {done}""")
        es(a, nm + "r")
        for i in range(4): a(f"s_mov_b64 exec, {S(MK[i],2)}\n" + ld(i))
        a(f"""s_mov_b64 exec, -1
        s_add_u32 {S(sT3)}, {S(sT3)}, 1
        s_and_b32 {S(sT0)}, {S(sT3)}, 255
        s_waitcnt vmcnt(0)
        s_cbranch_scc1 {nm}""")
        timeout_check(a, end)
        a(f"s_branch {nm}\n{done}:")
        es(a, nm + "n", sT3)
    a(f"s_waitcnt lgkmcnt({W1})")
    poll("EN_P1", lambda i: f"buffer_load_dwordx4 {V(32+4*i,4)}, v13, {S(SWS,4)}, {S(sPB if i < 2 else sPB2)} offen offset:{(i%2)*2048} sc1",
         lambda i: a(f"{MF} v[52:55], v[48:51], {V(32+4*i,4)}, {'0' if i == 0 else 'v[52:55]'}\nv_and_b32 v58, 1, {V(32+4*i)}\nv_cmp_ne_u32 {S(MK[i],2)}, {S(sTAG)}, v58"), "EN_P1d")
    a("s_nop 1")
    for i in range(4): a(f"v_add_f32_dpp {V(52+i)}, {V(52+i)}, {V(52+i)} row_ror:8 row_mask:0xf bank_mask:0xf")
    a(f"v_cvt_pk_bf16_f32 v52, v52, v53\nv_cvt_pk_bf16_f32 v53, v54, v55\ns_mov_b64 exec, {S(sM8,2)}\ns_cmp_eq_u32 {S(sFAST)}, 0")
    store2(f"buffer_store_dwordx2 v[52:53], v14, {S(SWS,4)}, {S(sMW)} offen@\nbuffer_store_dwordx2 v[56:57], v14, {S(SWS,4)}, {S(sMZ)} offen@")
    a("s_mov_b64 exec, -1")
    stamp(a, 2); prof_store(a, sS, 60); es(a, "h1")
    poll("EN_P2", lambda i: f"buffer_load_dwordx4 {V(32+4*i,4)}, v15, {S(SWS,4)}, {S(sMW)} offen offset:{i*1024} sc1",
         lambda i: a(f"ds_write_b128 v0, {V(32+4*i,4)} offset:{i*1024}\nv_max_u32 v58, {V(32+4*i)}, {V(34+4*i)}\nv_cmp_eq_u32 {S(MK[i],2)}, -1, v58"), "EN_NEXT")
    a("s_waitcnt vmcnt(0)")
    es(a, "h2"); es_store(a, 40)
    a(f"""
    s_cmp_lg_u32 {S(sKOK)}, 0
    s_cbranch_scc1 EN_STEP""")
    flag_wait("B"); a("\n".join(dma)); a(adv + "\ns_waitcnt vmcnt(0)")
    a("s_branch EN_STEP\nEN_ND:"); a.out += nodma
    a(f"""s_branch EN_NDR
EN_LAST:
    s_waitcnt vmcnt(0)
    s_barrier
    s_add_u32 {S(sSIG)}, {S(sSIG)}, 1024""")
    a(sig(16))
```

```python
from common import *
def dmap0(kk): return 128 * (kk // 4) + 8 * (kk % 4)
def cnt_s(a, dst, l, cur, kind, shift=0):
    if shift: a(f"s_lshr_b32 {S(dst)}, {S(cur)}, {shift}\ns_lshl_b32 {S(dst)}, {S(dst)}, 8")
    else: a(f"s_lshl_b32 {S(dst)}, {S(cur)}, 8")
    a(f"s_add_u32 {S(dst)}, {S(dst)}, {CNT_S + l*64*256 + kind*64}")
def load_seg(base, code, v0):
    prep = f"""s_lshl_b32 {S(sL0)}, {S(code)}, 15
    s_lshl_b32 {S(sL1)}, {S(sW)}, 13
    s_add_u32 {S(sL0)}, {S(sL0)}, {S(sL1)}
    s_add_u32 {S(sL0)}, {S(sL0)}, {base}
    s_xor_b32 {S(sL2)}, {S(sTOG)}, 1
    s_lshl_b32 {S(sL2)}, {S(sL2)}, 15
    s_add_u32 m0, {S(sL2)}, {S(sL1)}
    s_nop 0"""
    return (prep, [(f"s_add_u32 {S(sL0)}, {S(sL0)}, 4096\ns_add_u32 m0, m0, 4096\ns_nop 0" if i == 4 else "",
                    f"buffer_load_dwordx4 v9, {S(SWS,4)}, {S(sL0)} offen offset:{(i%4)*1024} sc1 lds") for i in range(8)])
def stage_seg(a, v0):
    a(f"s_lshl_b32 {S(sT0)}, {S(sTOG)}, 15\nv_add_u32 v8, {S(sT0)}, v9")
def pk(a, d, lo, hi): a(f"v_cvt_pk_bf16_f32 {V(d)}, {V(lo)}, {V(hi)}")

class QKVRole(Role):
    R = 2; prefer = 1; NS = 4; expect = 4
    def __init__(s, isv): s.isv = isv; s.name = "RV" if isv else "RQK"
    def flag_off(s, a, dst, l, cur): cnt_s(a, dst, l, cur, 0)
    def prologue(s, a):
        a(f"""v_lshlrev_b32 v7, 4, v0
        v_lshlrev_b32 v9, 4, v1
        s_lshr_b32 {S(sT1)}, {S(sW)}, 1
        s_lshl_b32 {S(sT2)}, s41, 1
        s_add_u32 {S(sT1)}, {S(sT1)}, {S(sT2)}        ; head
        s_and_b32 {S(sT2)}, {S(sW)}, 1                ; u
        s_lshl_b32 {S(sOFF)}, s40, 5
        s_add_u32 {S(sOFF)}, {S(sOFF)}, {S(sT1)}
        s_lshl_b32 {S(sOFF)}, {S(sOFF)}, 13
        s_lshl_b32 {S(sT3)}, {S(sT2)}, {12 if s.isv else 11}
        s_add_u32 {S(sOFF)}, {S(sOFF)}, {S(sT3)}
        s_add_u32 {S(sOFF)}, {S(sOFF)}, {QKV}
        s_lshl_b32 {S(sT1)}, {S(sT1)}, 8
        s_lshl_b32 {S(sT2)}, {S(sT2)}, 7
        s_add_u32 {S(sT1)}, {S(sT1)}, {S(sT2)}
        v_lshrrev_b32 v5, 4, v1
        v_lshlrev_b32 v5, 18, v5                      ; g*32 rows*8192
        v_and_b32 v6, 15, v1
        v_lshlrev_b32 v6, 3, v6
        v_add3_u32 v8, v5, v6, {S(sT1)}""")
        units = []
        for kk in range(16):
            def sink(base, nd, kk=kk):
                for j in range(4):
                    for r in range(4): perm_to(a, base, nd, j, r, ("a", kk*16 + j*4 + r), 5 + (r & 1))
            units.append(([(dmap0(kk) + jj) * 8192 for jj in range(8)], sink))
        load_w(a, units, SA, 8, 4, 16, 6)
    def loads(s, code): return load_seg(XN, code, 10)
    def stage(s, a): stage_seg(a, 10)
    def mm(s, a, k0, k1):
        rd = lambda kk: [a(f"ds_read_b128 {V(80+(kk%4)*8+tt*4,4)}, v8 offset:{tt*16384+kk*1024}") for tt in range(2)]
        for kk in range(k0, min(k0 + 3, k1)): rd(kk)
        for kk in range(k0, k1):
            a(f"s_waitcnt lgkmcnt({2*(min(kk+3,k1)-kk-1)})")
            for tt in range(2):
                for j in range(4):
                    acc = V(48 + tt*16 + j*4, 4); w = A(kk*16 + j*4, 4); x = V(80+(kk%4)*8+tt*4, 4)
                    c = "0" if kk == 0 else acc
                    a(f"v_mfma_f32_16x16x32_bf16 {acc}, {x if s.isv else w}, {w if s.isv else x}, {c}")
                if tt == 0 and kk + 3 < k1: rd(kk + 3)
                if tt == 1: s.fill(a)
    def compute1(s, a): s.mm(a, 0, 8)
    def compute2(s, a): s.mm(a, 8, 16)
    def stores(s, a):
        a(f"s_mul_i32 {S(sT0)}, {S(sCUR)}, 786432\ns_add_u32 {S(sT0)}, {S(sT0)}, {S(sOFF)}\ns_add_u32 {S(sT1)}, {S(sT0)}, 4096")
        D = lambda tt, j, i: 48 + tt*16 + j*4 + i
        for n in range(4):
            p = 112 + 4*n
            if s.isv:
                pk(a, p, D(0,n,0), D(0,n,1)); pk(a, p+1, D(0,n,2), D(0,n,3)); pk(a, p+2, D(1,n,0), D(1,n,1)); pk(a, p+3, D(1,n,2), D(1,n,3))
                a(f"buffer_store_dwordx4 {V(p,4)}, v9, {S(SWS,4)}, {S(sT0)} offen offset:{n*1024} sc1")
            else:
                tt, v = n // 2, n % 2
                pk(a, p, D(tt,0,2*v), D(tt,1,2*v)); pk(a, p+1, D(tt,2,2*v), D(tt,3,2*v))
                pk(a, p+2, D(tt,0,2*v+1), D(tt,1,2*v+1)); pk(a, p+3, D(tt,2,2*v+1), D(tt,3,2*v+1))
                a(f"buffer_store_dwordx4 {V(p,4)}, v9, {S(SWS,4)}, {S(sT0+tt)} offen offset:{v*1024} sc1")
    def signal(s, a, sk):
        a(f"s_lshl_b32 {S(sT0)}, {S(sPEND)}, 4\ns_add_u32 {S(sT0)}, {S(sT0)}, s41\ns_lshl_b32 {S(sT0)}, {S(sT0)}, 6")
        a(f"s_cmp_eq_u32 s40, 0\ns_cselect_b32 {S(sT1)}, 1, 0x100\nv_mov_b32 v5, {S(sT1)}")

def ln_part1(a, X, t, ldsaddr):
    a(f"v_add_f32 {V(t)}, {V(X)}, {V(X+1)}")
    for i in range(2, 16): a(f"v_add_f32 {V(t)}, {V(t)}, {V(X+i)}")
    xsum(a, t, t+1, (3, 4, 5))
    a(f"ds_write_b32 {V(ldsaddr)}, {V(t)}")
def ln_gather(a, t, rdaddr, off):
    for w in range(4): a(f"ds_read_b32 {V(t+w)}, {V(rdaddr)} offset:{off+w*32}")
    a(f"s_waitcnt lgkmcnt(0)\nv_add_f32 {V(t)}, {V(t)}, {V(t+1)}\nv_add_f32 {V(t+2)}, {V(t+2)}, {V(t+3)}\nv_add_f32 {V(t)}, {V(t)}, {V(t+2)}")
def ln_part2(a, X, t, ldsaddr, rdaddr):
    ln_gather(a, t, rdaddr, 0)
    a(f"v_mul_f32 {V(t)}, 0x3b000000, {V(t)}")
    for i in range(16): a(f"v_sub_f32 {V(X+i)}, {V(X+i)}, {V(t)}")
    a(f"v_mul_f32 {V(t)}, {V(X)}, {V(X)}")
    for i in range(1, 16): a(f"v_fmac_f32 {V(t)}, {V(X+i)}, {V(X+i)}")
    xsum(a, t, t+1, (3, 4, 5))
    a(f"ds_write_b32 {V(ldsaddr)}, {V(t)} offset:128")
def ln_part3(a, X, t, rdaddr, P):
    ln_gather(a, t, rdaddr, 128)
    a(f"v_mov_b32 {V(t+1)}, 0x3727c5ac\nv_fmac_f32 {V(t+1)}, 0x3b000000, {V(t)}\nv_rsq_f32 {V(t)}, {V(t+1)}")
    for i in range(16): a(f"v_mul_f32 {V(X+i)}, {V(X+i)}, {V(t)}")
    for i in range(8): pk(a, P+i, X+2*i, X+2*i+1)
def unpack(a, X, P, n, add=False):
    for i in range(n):
        a(f"v_lshlrev_b32 {V(X+2*i)}, 16, {V(P+i)}\nv_and_b32 {V(X+2*i+1)}, 0xffff0000, {V(P+i)}")
def af_lane_setup(a):
    a(f"""v_lshrrev_b32 v5, 4, v1                 ; g
    v_bfe_u32 v6, v1, 3, 1                   ; ih
    v_and_b32 v10, 7, v1                     ; c8
    v_lshlrev_b32 v7, 8, v5
    v_lshl_add_u32 v7, v6, 10, v7
    v_lshl_add_u32 v7, v10, 4, v7
    s_lshl_b32 {S(sT0)}, {S(sW)}, 12
    v_add_u32 v7, {S(sT0)}, v7
    v_lshlrev_b32 v8, 6, v5
    v_lshl_add_u32 v8, v6, 4, v8
    v_lshl_add_u32 v8, v10, 10, v8
    s_lshl_b32 {S(sT0)}, {S(sW)}, 8
    v_add_u32 v8, {S(sT0)}, v8
    v_lshlrev_b32 v10, 2, v10
    s_lshl_b32 {S(sT0)}, {S(sW)}, 5
    v_add_u32 v9, {S(sT0)}, v10""")
def af_item_off(a, dst, code, segbytes, tmp):
    return a(f"""s_lshr_b32 {S(dst)}, {S(code)}, 2
    s_mul_i32 {S(dst)}, {S(dst)}, {segbytes}
    s_bfe_u32 {S(tmp)}, {S(code)}, 0x10001
    s_lshl_b32 {S(tmp)}, {S(tmp)}, 14
    s_add_u32 {S(dst)}, {S(dst)}, {S(tmp)}
    s_and_b32 {S(tmp)}, {S(code)}, 1
    s_lshl_b32 {S(tmp)}, {S(tmp)}, 7
    s_add_u32 {S(dst)}, {S(dst)}, {S(tmp)}""")

def gen_init(a):
    a(f"s_cmp_ge_u32 s2, 256\ns_cbranch_scc1 INIT_END")
    srd(a, SWS, K_WS, WS_BYTES); srd(a, SA, K_X, 2097152)
    a(f"v_and_b32 v1, 63, v0\nv_lshrrev_b32 v5, 6, v0\nv_readfirstlane_b32 {S(sW)}, v5")
    af_lane_setup(a)
    a(f"s_lshl_b32 {S(sT0)}, s2, 13")
    a(f"buffer_load_dwordx4 v[12:15], v8, {S(SA,4)}, {S(sT0)} offen\nbuffer_load_dwordx4 v[16:19], v8, {S(SA,4)}, {S(sT0)} offen offset:32")
    a(f"""v_mov_b32 v40, 0
    v_mov_b32 v41, 0
    v_mov_b32 v42, 0
    v_mov_b32 v43, 0
    v_lshlrev_b32 v44, 4, v1
    s_lshl_b32 {S(sT1)}, s2, 10
    s_cmp_eq_u32 {S(sW)}, 1
    s_cselect_b32 {S(sT2)}, {ENG}, 0
    s_cmp_eq_u32 {S(sW)}, 2
    s_cselect_b32 {S(sT2)}, {ENG+ENG_STRIDE}, {S(sT2)}
    s_add_u32 {S(sT1)}, {S(sT1)}, {S(sT2)}
    s_cmp_eq_u32 {S(sW)}, 3
    s_cbranch_scc1 INIT_W3
    s_cmp_lg_u32 {S(sW)}, 0
    s_cbranch_scc1 INIT_ST
    ; wave0: XN flags of layer 0 (CNT_S + s*256, s<64) preset to 4 : wgs 128..143, lanes with lane%16==0
    s_sub_u32 {S(sT2)}, s2, 128
    s_cmp_ge_u32 {S(sT2)}, 16
    s_cbranch_scc1 INIT_ST
    v_and_b32 v45, 15, v1
    v_cmp_eq_u32 vcc, 0, v45
    v_cndmask_b32 v40, 0, 4, vcc
    s_branch INIT_ST
INIT_W3:
    s_cmp_ge_u32 s2, 48
    s_cbranch_scc1 INIT_NOST
    v_mov_b32 v40, -1
    v_mov_b32 v41, -1
    v_mov_b32 v42, -1
    v_mov_b32 v43, -1
    s_lshl_b32 {S(sT1)}, s2, 10
    s_add_u32 {S(sT2)}, {S(sT1)}, {ENG+ENG_STRIDE+MEMB-24*1024}
    s_add_u32 {S(sT1)}, {S(sT1)}, {ENG+MEMB}
    s_cmp_ge_u32 s2, 24
    s_cselect_b32 {S(sT1)}, {S(sT2)}, {S(sT1)}
INIT_ST:
    buffer_store_dwordx4 v[40:43], v44, {S(SWS,4)}, {S(sT1)} offen
INIT_NOST:
    s_waitcnt vmcnt(0)""")
    af_item_off(a, sOFF, 2, 32768, sT0)
    a(f"s_add_u32 {S(sT0)}, {S(sOFF)}, {XR}")
    a(f"buffer_store_dwordx4 v[12:15], v7, {S(SWS,4)}, {S(sT0)} offen\nbuffer_store_dwordx4 v[16:19], v7, {S(SWS,4)}, {S(sT0)} offen offset:2048")
    unpack(a, 20, 12, 8)
    ln_part1(a, 20, 36, 9); a("s_waitcnt lgkmcnt(0)\ns_barrier")
    ln_part2(a, 20, 36, 9, 10); a("s_waitcnt lgkmcnt(0)\ns_barrier")
    ln_part3(a, 20, 36, 10, 48)
    a(f"s_add_u32 {S(sT0)}, {S(sOFF)}, {XN}")
    a(f"buffer_store_dwordx4 v[48:51], v7, {S(SWS,4)}, {S(sT0)} offen\nbuffer_store_dwordx4 v[52:55], v7, {S(SWS,4)}, {S(sT0)} offen offset:2048")
    a("INIT_END:\ns_endpgm")
```

```python
from roles import *
MF = "v_mfma_f32_16x16x32_bf16"
class RedRole(Role):
    NI = 256; prefer = 0; D2 = False
    def __init__(s, kind, NR):
        s.kind = kind; s.R = NR; s.name = f"RR{kind}"; s.np = 16 if kind == 1 else NFS
        s.expect = s.np; s.NS = 4 if kind == 1 else 2
    def flag_off(s, a, dst, l, cur): cnt_s(a, dst, l, cur, 1 if s.kind == 1 else 3, 2)
    def prologue(s, a):
        if s.kind == 2: srd(a, SA, K_OUT, 2097152)
        af_lane_setup(a)
        a("""v_lshrrev_b32 v5, 4, v1
        v_bfe_u32 v6, v1, 2, 2
        v_cmp_eq_u32 vcc, v5, v6
        v_and_b32 v5, 1, v1
        v_lshlrev_b32 v5, 4, v5
        v_mov_b32 v6, 0x3f80
        v_lshlrev_b32 v5, v5, v6
        v_cndmask_b32 v5, 0, v5, vcc
        v_and_b32 v6, 2, v1
        v_cmp_eq_u32 vcc, 0, v6
        v_cndmask_b32 v12, 0, v5, vcc
        v_cndmask_b32 v13, v5, 0, vcc
        v_mov_b32 v14, 0
        v_mov_b32 v15, 0
        v_mov_b32 v16, 0
        v_mov_b32 v17, 0
        v_mov_b32 v18, v12
        v_mov_b32 v19, v13""")
    def loads(s, code):
        prep = af_item_off(str, sL0, code, 32768, sL2) + f"\ns_add_u32 {S(sL0)}, {S(sL0)}, {XR if s.kind == 1 else X1}\n"
        prep += af_item_off(str, sL1, code, 32768 * s.np, sL2) + f"\ns_add_u32 {S(sL1)}, {S(sL1)}, {(P1 if s.kind == 1 else P2) - 32768}"
        L = [("", f"buffer_load_dwordx4 {V(64+4*m,4)}, v7, {S(SWS,4)}, {S(sL0)} offen offset:{m*2048} sc1") for m in range(2)]
        for p in range(s.np):
            L += [("" if m else f"s_add_u32 {S(sL1)}, {S(sL1)}, 32768", f"buffer_load_dwordx4 {V(72+8*p+4*m,4)}, v7, {S(SWS,4)}, {S(sL1)} offen offset:{m*2048} sc1") for m in range(2)]
        return prep, L
    def stage(s, a):
        for p in range(s.np + 1):
            for m in range(2):
                for h in range(2):
                    acc = V(20 + 8*m + 4*h, 4)
                    a(f"{MF} {acc}, {V(12+4*h,4)}, {V(64+8*p+4*m,4)}, {'0' if p == 0 else acc}")
        for i in range(8): pk(a, 44+i, 20+2*i, 21+2*i)
        unpack(a, 20, 44, 8)
        ln_part1(a, 20, 36, 9)
    def compute1(s, a): ln_part2(a, 20, 36, 9, 10)
    def compute2(s, a): ln_part3(a, 20, 36, 10, 52)
    def stores(s, a):
        af_item_off(a, sT0, sCUR, 32768, sT1)
        def st(src, base):
            a(f"s_add_u32 {S(sT1)}, {S(sT0)}, {base}")
            for m in range(2): a(f"buffer_store_dwordx4 {V(src+4*m,4)}, v7, {S(SWS,4)}, {S(sT1)} offen offset:{m*2048} sc1")
        if s.kind == 1: st(52, XN1); st(44, X1)
        else:
            a(f"s_cmp_ge_u32 {S(sCUR)}, 256\ns_cbranch_scc1 RR2_OUT")
            st(52, XN + 2097152); st(44, XR + 2097152)
            a(f"s_branch RR2_ST\nRR2_OUT:\ns_sub_u32 {S(sT0)}, {S(sCUR)}, 256\ns_lshl_b32 {S(sT0)}, {S(sT0)}, 13")
            for m in range(2): a(f"buffer_store_dwordx4 {V(44+4*m,4)}, v8, {S(SA,4)}, {S(sT0)} offen offset:{m*32}")
            a("RR2_ST:")
    def signal(s, a, sk):
        if s.kind == 1: cnt_s(a, sT0, 0, sPEND, 2, 2)
        else:
            a(f"s_cmp_ge_u32 {S(sPEND)}, 256\ns_cbranch_scc1 {sk}")
            cnt_s(a, sT0, 1, sPEND, 0, 2)
        a("v_mov_b32 v5, 1")

def out_gemm(s, a, wbase, nks, acc0, ring, rdaddr, tts, extra=None):
    seq = [(tt, ks) for tt in tts for ks in range(nks)]
    rd = lambda n: a(f"ds_read_b128 {V(ring+(n%4)*4,4)}, {V(rdaddr)} offset:{(seq[n][0]*nks+seq[n][1])*1024}")
    for n in range(3): rd(n)
    for n, (tt, ks) in enumerate(seq):
        if ks == 0:
            if extra: s.side += extra(tt)
            left = nks * 8 - 2; todo = len(s.side); done = 0
        a(f"s_waitcnt lgkmcnt({min(n+3,len(seq))-n-1})")
        for j in range(8):
            acc = V(acc0 + tt*32 + j*4, 4)
            a(f"{MF} {acc}, {A(wbase+ks*32+j*4,4)}, {V(ring+(n%4)*4,4)}, {'0' if ks == 0 else acc}")
            if j == 1 and n + 3 < len(seq): rd(n + 3)
            while done < todo and done * left < (ks*8 + j - 1) * todo: s.fill(a); done += 1
def out_st(acc0, pkr, tt):
    r = []
    for i in range(4):
        p = pkr + i * 4
        r += [f"v_cvt_pk_bf16_f32 {V(p+q)}, {V(acc0 + tt*32 + (2*q)*4 + i)}, {V(acc0 + tt*32 + (2*q+1)*4 + i)}" for q in range(4)]
        r += [f"buffer_store_dwordx4 {V(p,4)}, v9, {S(SWS,4)}, {S(sT2+tt)} offen offset:{i*1024} sc1"]
    return r
def out_prep(a, nparts):
    a(f"s_mul_i32 {S(sT2)}, {S(sCUR)}, {nparts*32768}\ns_add_u32 {S(sT2)}, {S(sT2)}, {S(sOFF)}\ns_add_u32 {S(sT3)}, {S(sT2)}, 16384")
def load_outw(a, rows0, nks, abase, gmul, soff):
    a(f"""v_lshrrev_b32 v5, 4, v1
    v_mul_u32_u24 v5, {gmul*1024}, v5
    v_and_b32 v6, 15, v1
    v_lshlrev_b32 v6, 4, v6
    s_lshl_b32 {S(sT1)}, {S(sW)}, 8
    v_add3_u32 v8, v5, v6, {S(sT1)}""")
    units = []
    for ks in range(nks):
        def sink(base, nd, ks=ks):
            for j in range(8):
                for r in range(4): perm_to(a, base, nd, j, r, ("a", abase + ks*32 + j*4 + r), 5 + (r & 1))
        units.append(([(rows0(ks) + jj) * 1024 for jj in range(8)], sink))
    load_w(a, units, SA, 8, 8, 16, 4, soff)

class FFRole(Role):
    prefer = 0; NS = 8; expect = 4; name = "RFF"
    def __init__(s, R): s.R = R
    def flag_off(s, a, dst, l, cur): cnt_s(a, dst, l, cur, 2)
    def prologue(s, a):
        a(f"""s_cmp_ge_u32 s44, {NFS}
        s_cselect_b32 {S(sC0)}, 1, 0
        s_cselect_b32 {S(sT0)}, {NFS}, 0
        s_mov_b32 {S(sC1)}, {S(sC0)}
        s_sub_u32 s41, s44, {S(sT0)}
        v_lshlrev_b32 v9, 4, v1
        s_lshl_b32 {S(sOFF)}, s41, 15
        s_lshl_b32 {S(sT0)}, {S(sW)}, 12
        s_add_u32 {S(sOFF)}, {S(sOFF)}, {S(sT0)}
        s_add_u32 {S(sOFF)}, {S(sOFF)}, {P2}
        s_lshl_b32 {S(sT1)}, s41, 8
        s_lshl_b32 {S(sT0)}, {S(sW)}, 6
        s_add_u32 {S(sT1)}, {S(sT1)}, {S(sT0)}
        s_cmp_ge_u32 {S(sT1)}, 2752
        s_cselect_b32 {S(sT1)}, 0x10000000, {S(sT1)}
        v_lshrrev_b32 v5, 4, v1
        v_mul_u32_u24 v5, {32*2752}, v5
        v_and_b32 v6, 15, v1
        v_lshlrev_b32 v6, 2, v6
        v_add3_u32 v8, v5, v6, {S(sT1)}
        s_lshl_b32 {S(sT0)}, {S(sW)}, 10
        v_add_u32 v11, {S(sT0)}, v9
        v_add_u32 v11, 65536, v11
        v_add_u32 v10, 65536, v9""")
        srd(a, SA, K_W1, 512*2752)
        units = []
        for kk in range(16):
            def sink(base, nd, kk=kk):
                for j in range(2):
                    for r in range(4): perm_to(a, base, nd, j, r, ("a", kk*8 + j*4 + r), 5 + (r & 1))
            units.append(([(dmap0(kk) + jj) * 2752 for jj in range(8)], sink))
        load_w(a, units, SA, 8, 2, 16, 7)
        srd(a, SA, K_W2, 1376*1024)
        a(f"s_lshl_b32 {S(sOFF2)}, s41, 17")
        load_outw(a, lambda ks: 32*ks, 4, 128, 8, sOFF2)
    def loads(s, code): return load_seg(XN1, code, 12)
    def stage(s, a): stage_seg(a, 12)
    def compute1(s, a):
        rd = lambda n: a(f"ds_read_b128 {V(80+(n%8)*4,4)}, v8 offset:{n*1024}")
        def silu(tt):
            x, y = 48 + tt*8, 64 + tt*8
            r = [f"v_mul_f32 {V(y+i)}, 0xbfb8aa3b, {V(x+i)}" for i in range(8)] + [f"v_exp_f32 {V(y+i)}, {V(y+i)}" for i in range(8)]
            r += [f"v_pk_add_f32 {V(y+i,2)}, {V(y+i,2)}, 1.0 op_sel_hi:[1,0]" for i in range(0, 8, 2)] + [f"v_rcp_f32 {V(y+i)}, {V(y+i)}" for i in range(8)]
            r += [f"v_pk_mul_f32 {V(x+i,2)}, {V(x+i,2)}, {V(y+i,2)}" for i in range(0, 8, 2)]
            r += [f"v_cvt_pk_bf16_f32 {V(y+i)}, {V(x+i)}, {V(x+4+i)}" for i in range(4)]
            return r
        for n in range(6): rd(n)
        for n in range(32):
            tt, kk = n // 16, n % 16
            if n == 18: s.flush(a); s.side = silu(0)
            a(f"s_waitcnt lgkmcnt({min(n+6,32)-n-1})")
            for j in range(2):
                acc = V(48 + tt*8 + j*4, 4)
                a(f"{MF} {acc}, {A(kk*8+j*4,4)}, {V(80+(n%8)*4,4)}, {'0' if kk == 0 else acc}")
                if j == 0 and n + 6 < 32: rd(n + 6)
                if n >= 18: s.fill(a, 1 + j)
                elif j == 1 and n % 2 == 0: s.fill(a)
        s.flush(a)
        a(f"ds_write_b128 v11, {V(64,4)}")
        for x in silu(1): a(x)
        a(f"ds_write_b128 v11, {V(72,4)} offset:4096")
    def compute2(s, a):
        out_prep(a, NFS); out_gemm(s, a, 128, 4, 128, 80, 10, (0, 1), lambda tt: out_st(128, 192, 0) if tt else [])
    def stores(s, a):
        for x in out_st(128, 208, 1): a(x)
    def signal(s, a, sk): cnt_s(a, sT0, 0, sPEND, 3); a("v_mov_b32 v5, 1")

SC = 128 ** -0.5 * 1.4426950408889634
import struct
def fbits(x): return "0x%08x" % struct.unpack("<I", struct.pack("<f", x))[0]
def softmax12(a, Sx, t, n=12):
    a(f"v_max3_f32 {V(t)}, {V(Sx)}, {V(Sx+1)}, {V(Sx+2)}")
    for i in range(3, n - 1, 2): a(f"v_max3_f32 {V(t)}, {V(t)}, {V(Sx+i)}, {V(Sx+i+1)}")
    a(f"v_max_f32 {V(t)}, {V(t)}, {V(Sx+n-1)}")
    xmax(a, t, t+1, (4, 5))
    a(f"v_mul_f32 {V(t)}, s45, {V(t)}")
    for i in range(n): a(f"v_fma_f32 {V(Sx+i)}, {V(Sx+i)}, s45, -{V(t)}")
    for i in range(n): a(f"v_exp_f32 {V(Sx+i)}, {V(Sx+i)}")
    a(f"v_add_f32 {V(t)}, {V(Sx)}, {V(Sx+1)}\nv_add_f32 {V(t+1)}, {V(Sx+2)}, {V(Sx+3)}")
    for i in range(4, n, 2): a(f"v_add_f32 {V(t)}, {V(t)}, {V(Sx+i)}\nv_add_f32 {V(t+1)}, {V(t+1)}, {V(Sx+i+1)}")
    a(f"v_add_f32 {V(t)}, {V(t)}, {V(t+1)}")
    xsum(a, t, t+1, (4, 5))
    a(f"v_rcp_f32 {V(t)}, {V(t)}")
class AWRole(Role):
    prefer = 0; N1 = 16; NS = 8; expect = 0x203; name = "RAW"
    Q, K, Vx, KM, VM = 16, 32, 64, 96, 112
    def __init__(s, R): s.R = R
    def flag_off(s, a, dst, l, cur):
        a(f"s_lshl_b32 {S(dst)}, {S(cur)}, 4\ns_add_u32 {S(dst)}, {S(dst)}, s41\ns_lshl_b32 {S(dst)}, {S(dst)}, 6\ns_add_u32 {S(dst)}, {S(dst)}, {CNT_H + l*65536}")
    def prologue(s, a):
        a(f"""s_lshr_b32 {S(sC0)}, s44, 4
        s_mov_b32 {S(sC1)}, {S(sC0)}
        s_and_b32 s41, s44, 15
        s_mov_b32 s45, {fbits(SC)}
        v_lshlrev_b32 v9, 4, v1
        s_lshl_b32 {S(sOFF)}, s41, 15
        s_lshl_b32 {S(sT0)}, {S(sW)}, 12
        s_add_u32 {S(sOFF)}, {S(sOFF)}, {S(sT0)}
        s_add_u32 {S(sOFF)}, {S(sOFF)}, {P1}
        s_lshr_b32 s46, {S(sW)}, 1                     ; hh
        s_and_b32 s47, {S(sW)}, 1                      ; tt
        s_lshl_b32 s48, s41, 1
        s_add_u32 s48, s48, s46                        ; head
        v_lshrrev_b32 v5, 4, v1                        ; g
        v_and_b32 v6, 15, v1                           ; c
        v_lshrrev_b32 v10, 2, v6
        v_lshlrev_b32 v10, 5, v10
        v_and_b32 v11, 1, v1
        v_lshl_add_u32 v10, v11, 4, v10
        v_lshl_add_u32 v10, v5, 7, v10
        v_lshlrev_b32 v11, 3, v1
        s_lshl_b32 {S(sT0)}, s47, 4
        v_add_u32 v6, {S(sT0)}, v6
        v_lshlrev_b32 v5, 2, v5
        v_mov_b32 v13, {fbits(-1e9 * 128 ** 0.5)}
        s_lshl_b32 {S(sT0)}, s47, 13
        s_lshl_b32 {S(sT1)}, s46, 12
        s_add_u32 {S(sT0)}, {S(sT0)}, {S(sT1)}
        v_add_u32 v14, {S(sT0)}, v9""")
        for n in range(8):
            a(f"v_add_u32 v7, {16*(n//4) + n%4}, v5\nv_cmp_le_u32 {S(52+2*n,2)}, v7, v6")
        srd(a, SA, K_WO, 4194304)
        a(f"s_lshl_b32 {S(sOFF2)}, s41, 18")
        load_outw(a, lambda ks: 128*(ks//4) + 64*((ks%4)//2) + 8*(ks%2), 8, 0, 16, sOFF2)
    def loads(s, code):
        prep = f"""s_mul_i32 {S(sL0)}, {S(code)}, 786432
        s_lshl_b32 {S(sL1)}, s48, 13
        s_add_u32 {S(sL0)}, {S(sL0)}, {S(sL1)}
        s_add_u32 {S(sL0)}, {S(sL0)}, {QKV}
        s_lshl_b32 {S(sL1)}, s47, 12
        s_add_u32 {S(sL1)}, {S(sL1)}, {S(sL0)}
        s_lshl_b32 {S(sL2)}, {S(code)}, 5
        s_add_u32 {S(sL2)}, {S(sL2)}, s48
        s_lshl_b32 {S(sL2)}, {S(sL2)}, 12
        s_add_u32 {S(sL2)}, {S(sL2)}, {KVM}"""
        ld = lambda r, so, o: f"buffer_load_dwordx4 {V(r,4)}, v9, {S(SWS,4)}, {S(so)} offen offset:{o} sc1"
        L = [("", ld(s.Q + 4*k, sL1, k*1024)) for k in range(4)]
        for base, add in ((s.K, 262144), (s.K+16, 4096), (s.Vx, 262144-4096), (s.Vx+16, 4096)):
            L += [("" if k else f"s_add_u32 {S(sL0)}, {S(sL0)}, {add}", ld(base + 4*k, sL0, k*1024)) for k in range(4)]
        L += [("", f"buffer_load_dwordx4 {V(s.KM+4*k,4)}, v10, {S(SWS,4)}, {S(sL2)} offen offset:{k*512} sc1") for k in range(4)]
        L += [("", f"buffer_load_dwordx2 {V(s.VM+2*t,2)}, v11, {S(SWS,4)}, {S(sL2)} offen offset:{2048+t*512} sc1") for t in range(4)]
        return prep, L
    def stage(s, a):
        Sx = 192
        for k in range(4):
            for n, kb in enumerate((s.K, s.K+16, s.KM)):
                acc = V(Sx+4*n, 4)
                a(f"{MF} {acc}, {V(kb+4*k,4)}, {V(s.Q+4*k,4)}, {'0' if k == 0 else acc}")
        for n in range(8): a(f"v_cndmask_b32 {V(Sx+n)}, v13, {V(Sx+n)}, {S(52+2*n,2)}")
        softmax12(a, Sx, 204, 10)
        a("v_mov_b32 v213, 0\nv_mov_b32 v214, 0")
        for i in range(10): a(f"v_mul_f32 {V(Sx+i)}, {V(Sx+i)}, v204")
        for i in range(5): pk(a, 208+i, Sx+2*i, Sx+2*i+1)
        pk(a, 215, Sx+8, Sx+9)
        O = 216
        for t in range(8): a(f"{MF} {V(O+4*t,4)}, {V(s.Vx+4*t,4)}, v[208:211], 0")
        for t in range(8): a(f"v_mfma_f32_16x16x16_bf16 {V(O+4*t,4)}, {V(s.VM+2*(t//2),2)}, {V(212+2*(t%2),2)}, {V(O+4*t,4)}")
        a(f"s_lshl_b32 {S(sT0)}, {S(sTOG)}, 14\nv_add_u32 v5, {S(sT0)}, v14\nv_add_u32 v8, {S(sT0)}, v9")
        for u in range(2):
            for v in range(2):
                p = 192 + 4*(2*u+v); D = lambda j, i: O + 4*(4*u+j) + i
                pk(a, p, D(0,2*v), D(1,2*v)); pk(a, p+1, D(2,2*v), D(3,2*v)); pk(a, p+2, D(0,2*v+1), D(1,2*v+1)); pk(a, p+3, D(2,2*v+1), D(3,2*v+1))
                a(f"ds_write_b128 v5, {V(p,4)} offset:{(2*u+v)*1024}")
    def compute1(s, a): out_gemm(s, a, 0, 8, 128, 192, 8, (0,))
    def compute2(s, a): out_prep(a, 16); out_gemm(s, a, 0, 8, 128, 192, 8, (1,), lambda tt: out_st(128, 216, 0))
    def stores(s, a):
        for x in out_st(128, 232, 1): a(x)
    def signal(s, a, sk): cnt_s(a, sT0, 0, sPEND, 1); a("v_mov_b32 v5, 1")
```

```python
import sys
from roles import *
from roles2 import *
from engine import *
NAME = "interleave_layers__memory_aug_recurrent_mem_tr__dense_activation_silu__prompt"
NAW, NFF, NR1, NR2 = 3, 2, 14, 12
def dispatcher(a):
    a(f"s_cmp_ge_u32 s2, 256\ns_cbranch_scc1 MAIN_END")
    a(f"s_memrealtime {S(sSTART,2)}")
    srd(a, SWS, K_WS, WS_BYTES); srd(a, SB, K_DBG, 256)
    a(f"""s_getreg_b32 s42, hwreg(HW_REG_XCC_ID, 0, 3)
    v_and_b32 v1, 63, v0
    v_mov_b32 v2, 0
    v_lshrrev_b32 v5, 6, v0
    v_readfirstlane_b32 {S(sW)}, v5
    s_mov_b32 {S(sLO)}, 0x05040100
    s_mov_b32 {S(sHI)}, 0x07060302
    s_cmp_lg_u32 {S(sW)}, 0
    s_cbranch_scc1 D_1
    s_mov_b64 exec, 1
    v_mov_b32 v5, 1
    v_mov_b32 v6, 1
    s_lshl_b32 {S(sT0)}, s42, 2
    buffer_atomic_add v5, v2, {S(SB,4)}, {S(sT0)} offen sc0
    s_waitcnt vmcnt(0)
    buffer_atomic_add v6, v2, {S(SB,4)}, 0 offen offset:32
    ds_write_b32 v2, v5
    s_waitcnt lgkmcnt(0)
    s_mov_b64 exec, -1
D_1:
    s_barrier
    ds_read_b32 v5, v2
    s_waitcnt lgkmcnt(0)
    v_readfirstlane_b32 s43, v5
    s_barrier
    s_lshl_b32 s44, s42, 5
    s_add_u32 s44, s44, s43
    s_cmp_lt_u32 s43, 32
    s_cbranch_scc1 D_ROLE
    v_lshlrev_b32 v6, 2, v1
D_2:
    buffer_load_dword v5, v6, {S(SB,4)}, 0 offen sc1
    s_waitcnt vmcnt(0)
    v_readlane_b32 {S(sT0)}, v5, 8
    s_cmp_ge_u32 {S(sT0)}, 256
    s_cbranch_scc1 D_3
    s_sleep 8""")
    timeout_check(a, "MAIN_END")
    a("s_branch D_2\nD_3:\nbuffer_load_dword v5, v6, s[12:15], 0 offen sc1\ns_waitcnt vmcnt(0)\ns_sub_u32 s43, s43, 32")
    for x in range(8):
        a(f"""v_readlane_b32 {S(sT0)}, v5, {x}
        s_max_u32 {S(sT0)}, {S(sT0)}, 32
        s_sub_u32 {S(sT0)}, {S(sT0)}, 32
        s_cmp_gt_u32 s42, {x}
        s_cselect_b32 {S(sT0)}, {S(sT0)}, 0
        s_add_u32 s43, s43, {S(sT0)}""")
    for x in range(8):
        a(f"""v_readlane_b32 {S(sT0)}, v5, {x}
        s_min_u32 {S(sT0)}, {S(sT0)}, 32
        s_add_u32 s44, {S(sT0)}, {x*32}
        s_add_u32 s44, s44, s43
        s_sub_u32 {S(sT0)}, 32, {S(sT0)}
        s_cmp_lt_u32 s43, {S(sT0)}
        s_cbranch_scc1 D_ROLE
        s_sub_u32 s43, s43, {S(sT0)}""")
    a("s_branch MAIN_END\nD_ROLE:")
    if PROF == 2: a(f"s_lshl_b32 s70, s44, 2\ns_add_u32 s70, s70, {S(sW)}\ns_lshl_b32 s70, s70, 12\ns_add_u32 s70, s70, 0xF000000")
    if PROF == 1:
        a("s_lshl_b32 s70, s44, 11\ns_add_u32 s70, s70, 0xF000000")
        a(f"s_memrealtime s[72:73]\ns_waitcnt lgkmcnt(0)\nv_mov_b32 v8, {S(sSTART)}\nv_mov_b32 v9, s72\nbuffer_store_dwordx2 v[8:9], v2, {S(SWS,4)}, s70 offen offset:2032")
    a(f"""s_cmp_lt_u32 s44, 64
    s_cbranch_scc1 J_ENG
    s_sub_u32 s44, s44, 64
    s_cmp_lt_u32 s44, 96
    s_cbranch_scc1 J_QKV
    s_sub_u32 s44, s44, 96
    s_cmp_lt_u32 s44, {16*NAW}
    s_cbranch_scc1 J_AW
    s_sub_u32 s44, s44, {16*NAW}
    s_cmp_lt_u32 s44, {NFS*NFF}
    s_cbranch_scc1 J_FF
    s_sub_u32 s44, s44, {NFS*NFF}
    s_mov_b32 {S(sC0)}, s44
    s_mov_b32 {S(sC1)}, s44
    s_cmp_lt_u32 s44, {NR1}
    s_cbranch_scc1 J_R1
    s_sub_u32 {S(sC0)}, s44, {NR1}
    s_mov_b32 {S(sC1)}, {S(sC0)}
    s_branch J_R2
MAIN_END:
    s_endpgm""")
def build(enable=("QKV", "ENG", "AW", "FF", "R1", "R2")):
    a = Asm()
    a.raw(open("header.txt").read().rstrip())
    a.raw("; @launch kernel=init_kernel grid=(256,1,1) block=(256,1,1) lds=512")
    a.raw("; @launch kernel=main_kernel grid=(256,1,1) block=(256,1,1) lds=163840")
    a.raw('.amdgcn_target "amdgcn-amd-amdhsa--gfx950"\n.text\n.globl init_kernel\n.p2align 8\n.type init_kernel,@function\ninit_kernel:')
    gen_init(a)
    a.raw('.globl main_kernel\n.p2align 8\n.type main_kernel,@function\nmain_kernel:')
    dispatcher(a)
    def sect(tag, fn):
        a(f"J_{tag}:")
        if tag in enable: fn(f"E_{tag}")
        a(f"E_{tag}:\ns_endpgm")
    def qkv(end):
        a(f"""s_cmp_ge_u32 s44, 48
        s_cselect_b32 {S(sC0)}, 1, 0
        s_cselect_b32 {S(sT0)}, 48, 0
        s_mov_b32 {S(sC1)}, {S(sC0)}
        s_sub_u32 s44, s44, {S(sT0)}
        s_lshr_b32 s40, s44, 4
        s_and_b32 s41, s44, 15
        s_cmp_eq_u32 s40, 2
        s_cbranch_scc1 J_V
        s_cmp_eq_u32 s40, 1
        s_cbranch_scc1 J_K""")
        srd(a, SA, K_WQ, 4194304); a("s_branch J_QK\nJ_K:"); srd(a, SA, K_WK, 4194304); a("J_QK:")
        QKVRole(False).gen(a, end)
        a("J_V:"); srd(a, SA, K_WV, 4194304)
        QKVRole(True).gen(a, end)
    sect("R1", lambda e: RedRole(1, NR1).gen(a, e))
    sect("R2", lambda e: RedRole(2, NR2).gen(a, e))
    sect("QKV", qkv)
    sect("FF", lambda e: FFRole(NFF).gen(a, e))
    sect("AW", lambda e: AWRole(NAW).gen(a, e))
    sect("ENG", lambda e: gen_engine(a, e))
    a.raw('.section .rodata,"a"')
    for k, nv, acc in (("init_kernel", 64, 64), ("main_kernel", 512, 256)):
        a.raw(f""".p2align 6
.amdhsa_kernel {k}
  .amdhsa_next_free_vgpr {nv}
  .amdhsa_next_free_sgpr 102
  .amdhsa_accum_offset {acc}
  .amdhsa_group_segment_fixed_size 0
  .amdhsa_kernarg_size 104
  .amdhsa_user_sgpr_count 2
  .amdhsa_user_sgpr_kernarg_segment_ptr 1
  .amdhsa_system_sgpr_workgroup_id_x 1
.end_amdhsa_kernel""")
    return a.text()
if __name__ == "__main__":
    en = tuple(sys.argv[2].split(",")) if len(sys.argv) > 2 else ("QKV", "ENG", "AW", "FF", "R1", "R2")
    out = sys.argv[1] if len(sys.argv) > 1 else f"cdna_kernels/{NAME}.s"
    open(out, "w").write(build(en))
```
